```python
import torch

def _softmax(x, axis=-1):
    return torch.softmax(x, dim=axis)
def _gelu(x):
    return torch.nn.functional.gelu(x, approximate="tanh")
def _silu(x):
    return torch.nn.functional.silu(x)
def _sigmoid(x):
    return torch.sigmoid(x)
def _layernorm(x, axis=-1, eps=1e-5):
    m = x.mean(dim=axis, keepdim=True)
    v = x.var(dim=axis, keepdim=True, unbiased=False)
    return (x - m) / torch.sqrt(v + eps)
def _scatter_add(tgt, idx, src, axis=0):
    return tgt.clone().index_add_(axis, idx, src)
def _segment_sum(src, seg, n):
    out = torch.zeros((n,) + src.shape[1:], dtype=src.dtype)
    return out.index_add_(0, seg, src)
def _pad(x, pw):
    flat = tuple(v for pair in reversed(pw) for v in pair)
    return torch.nn.functional.pad(x, flat)

kernel_name = 'concat_heads__mha_block_cached__gqa_block_cached__decode'

def setup_inputs():

    _w = (lambda a: (lambda t: t.to(torch.bfloat16) if t.is_floating_point() else t)(torch.as_tensor(a)))
    def _A_setup():
        B, Sq, D = 1, 1, 640
        H, Sk, Dh = 32, 8192, 128
        return {
            "x": _w((lambda *s: torch.randn(*s, dtype=torch.bfloat16) * 0.8)(B, Sq, D)),
            "k_cache": _w((lambda *s: torch.randn(*s, dtype=torch.bfloat16) * 1.6)(B, H, Sk, Dh)),
            "v_cache": _w((lambda *s: torch.randn(*s, dtype=torch.bfloat16) * 0.2)(B, H, Sk, Dh)),
            "wq": _w((lambda *s: torch.randn(*s, dtype=torch.bfloat16) * 1.6)(D, H * Dh) * (D ** -0.5)),
            "wo": _w((lambda *s: torch.randn(*s, dtype=torch.bfloat16) * 0.2)(H * Dh, D) * ((H * Dh) ** -0.5)),
        }
    _A_in = _A_setup()

    def _B_setup():
        B, Sq, D = 1, 1, 640
        Hq, Hkv, Sk, Dh = 32, 32, 8192, 128
        assert Hq % Hkv == 0, (Hq, Hkv)
        return {
            "x": _w((lambda *s: torch.randn(*s, dtype=torch.bfloat16) * 0.8)(B, Sq, D)),
            "k_cache": _w((lambda *s: torch.randn(*s, dtype=torch.bfloat16) * 1.6)(B, Hkv, Sk, Dh)),
            "v_cache": _w((lambda *s: torch.randn(*s, dtype=torch.bfloat16) * 0.2)(B, Hkv, Sk, Dh)),
            "wq": _w((lambda *s: torch.randn(*s, dtype=torch.bfloat16) * 1.6)(D, Hq * Dh) * (D ** -0.5)),
            "wo": _w((lambda *s: torch.randn(*s, dtype=torch.bfloat16) * 0.2)(Hq * Dh, D) * ((Hq * Dh) ** -0.5)),
        }
    _B_in = _B_setup()

    return {
        "A_x": _A_in["x"],
        "A_k_cache": _A_in["k_cache"],
        "A_v_cache": _A_in["v_cache"],
        "A_wq": _A_in["wq"],
        "A_wo": _A_in["wo"],
        "B_x": _B_in["x"],
        "B_k_cache": _B_in["k_cache"],
        "B_v_cache": _B_in["v_cache"],
        "B_wq": _B_in["wq"],
        "B_wo": _B_in["wo"],
    }

def reference(A_x, A_k_cache, A_v_cache, A_wq, A_wo, B_x, B_k_cache, B_v_cache, B_wq, B_wo):
    def _A_ref(x, k_cache, v_cache, wq, wo):
        B, Sq, D = x.shape
        H, Dh = 32, 128
        q = (lambda x, *d: x.permute(*d))((x @ wq).reshape(B, Sq, H, Dh), 0, 2, 1, 3)
        scores = torch.einsum("bhqd,bhkd->bhqk", q, k_cache) * (Dh ** -0.5)
        p = _softmax(scores, axis=-1)
        o = torch.einsum("bhqk,bhkd->bhqd", p, v_cache)
        return (lambda x, *d: x.permute(*d))(o, 0, 2, 1, 3).reshape(B, Sq, H * Dh) @ wo

    def _B_ref(x, k_cache, v_cache, wq, wo):
        B, Sq, D = x.shape
        Hq, Dh = 32, 128
        Hkv = k_cache.shape[1]
        rep = Hq // Hkv
        q = (lambda x, *d: x.permute(*d))((x @ wq).reshape(B, Sq, Hq, Dh), 0, 2, 1, 3)
        k = (lambda x, n, axis: torch.repeat_interleave(x, n, dim=axis))(k_cache, rep, axis=1)
        v = (lambda x, n, axis: torch.repeat_interleave(x, n, dim=axis))(v_cache, rep, axis=1)
        scores = torch.einsum("bhqd,bhkd->bhqk", q, k) * (Dh ** -0.5)
        p = _softmax(scores, axis=-1)
        o = torch.einsum("bhqk,bhkd->bhqd", p, v)
        return (lambda x, *d: x.permute(*d))(o, 0, 2, 1, 3).reshape(B, Sq, Hq * Dh) @ wo

    a = _A_ref(A_x, A_k_cache, A_v_cache, A_wq, A_wo)
    b = _B_ref(B_x, B_k_cache, B_v_cache, B_wq, B_wo)
    return torch.concatenate([a, b], axis=-1)
```

```python
import re

TRANS = ("v_exp_f32", "v_log_f32", "v_rcp_f32", "v_rsq_f32", "v_sqrt_f32", "v_sin_f32", "v_cos_f32")


def _regs(tok):
    tok = tok.strip()
    tok = tok.lstrip("-")
    m = re.match(r"^abs\((.*)\)$", tok)
    if m:
        tok = m.group(1)
    m = re.match(r"^\|(.*)\|$", tok)
    if m:
        tok = m.group(1)
    m = re.match(r"^([vsa])(\d+)$", tok)
    if m:
        return [(m.group(1), int(m.group(2)))]
    m = re.match(r"^([vsa])\[(\d+):(\d+)\]$", tok)
    if m:
        return [(m.group(1), i) for i in range(int(m.group(2)), int(m.group(3)) + 1)]
    if tok == "vcc":
        return [("s", 106), ("s", 107)]
    if tok == "exec":
        return [("s", 126), ("s", 127)]
    if tok == "m0":
        return [("s", 124)]
    return []


def _split_ops(rest):
    ops, depth, cur = [], 0, ""
    for ch in rest:
        if ch in "[(":
            depth += 1
        if ch in "])":
            depth -= 1
        if ch == "," and depth == 0:
            ops.append(cur.strip())
            cur = ""
        else:
            cur += ch
    if cur.strip():
        ops.append(cur.strip())
    mods = ""
    if ops:
        last = ops[-1]
        depth = 0
        for i, ch in enumerate(last):
            if ch in "[(":
                depth += 1
            if ch in "])":
                depth -= 1
            if ch == " " and depth == 0:
                mods = last[i + 1:]
                ops[-1] = last[:i]
                break
    return ops, mods


class Asm:
    def __init__(self):
        self.lines = []
        self.pos = 0
        self.vw = {}
        self.sw = {}
        self.stw = {}
        self.m0w = -100
        self.mfma = {}
        self.mfma_c = {}
        self.vm = []
        self.nops = 0

    def raw(self, s):
        self.lines.append(s)

    def comment(self, s):
        self.lines.append("    ; " + s)

    def label(self, name, pad=True):
        self.lines.append(name + ":")
        if pad:
            self._nop(5)

    def _nop(self, n):
        while n > 0:
            k = min(n, 16)
            self.lines.append("    s_nop %d" % (k - 1))
            self.pos += k
            self.nops += 1
            n -= k

    def __call__(self, text):
        text = text.strip()
        m = re.match(r"^(\S+)\s*(.*)$", text)
        mn, rest = m.group(1), m.group(2)
        ops, mods = _split_ops(rest)
        base = re.sub(r"_(e32|e64|dpp|sdwa)$", "", mn)
        is_valu = mn.startswith("v_")
        is_mfma = mn.startswith("v_mfma")
        is_vmem = mn.startswith(("buffer_", "global_"))
        is_ds = mn.startswith("ds_")
        is_dpp = mn.endswith("_dpp") or "row_" in mods or "quad_perm" in mods
        need = 0

        def req(wpos, states):
            nonlocal need
            need = max(need, wpos + 1 + states)

        reads, writes = [], []
        if is_valu:
            if base.startswith("v_permlane") and "swap" in base:
                reads = _regs(ops[0]) + _regs(ops[1])
                writes = list(reads)
            elif base.startswith("v_cmp"):
                writes = _regs(ops[0])
                for o in ops[1:]:
                    reads += _regs(o)
            else:
                writes = _regs(ops[0])
                k = 1
                if base in ("v_add_co_u32", "v_sub_co_u32", "v_addc_co_u32"):
                    writes += _regs(ops[1])
                    k = 2
                for o in ops[k:]:
                    reads += _regs(o)
                if base in ("v_fmac_f32", "v_dot2c_f32_bf16", "v_pk_fmac_f16") or (
                        is_dpp and ("bank_mask" in mods or "row_mask" in mods)):
                    reads += _regs(ops[0])
                if base == "v_cndmask_b32" and len(ops) == 3:
                    reads += _regs("vcc")
            is_dot = base.startswith("v_dot")
            is_trans = base in TRANS
            for r in reads:
                if r[0] == "v" and r[1] in self.vw:
                    wp, kind, op = self.vw[r[1]]
                    if kind == "dot":
                        same_c = False
                        if is_dot and op == base:
                            if base == "v_dot2c_f32_bf16":
                                same_c = r in _regs(ops[0]) and r not in _regs(ops[1]) + _regs(ops[2])
                            else:
                                same_c = r in _regs(ops[3]) and r not in _regs(ops[1]) + _regs(ops[2])
                        if not same_c:
                            req(wp, 3)
                    if kind == "trans" and not is_trans:
                        req(wp, 1)
                    if is_dpp and r in _regs(ops[1]):
                        req(wp, 2)
                    if base.startswith("v_permlane"):
                        req(wp, 2)
                    if base in ("v_readlane_b32", "v_readfirstlane_b32"):
                        req(wp, 1)
                    if is_mfma:
                        req(wp, 2)
                if r[0] == "v" and r[1] in self.mfma:
                    wp, passes = self.mfma[r[1]]
                    if is_mfma:
                        if r in _regs(ops[3]) and r not in _regs(ops[1]) + _regs(ops[2]):
                            pass
                        else:
                            req(wp, {2: 5, 4: 8, 8: 12, 16: 20}[passes])
                    else:
                        req(wp, {2: 5, 4: 8, 8: 12, 16: 20}[passes])
                if r[0] == "s" and r[1] in self.sw:
                    req(self.sw[r[1]], 4 if base in ("v_readlane_b32", "v_writelane_b32") else 2)
                    if is_dpp and r[1] in (126, 127):
                        req(self.sw[r[1]], 5)
            if is_dpp:
                for e in (126, 127):
                    if e in self.sw:
                        req(self.sw[e], 5)
            for w in writes:
                if w[0] == "v":
                    if w[1] in self.vw and self.vw[w[1]][1] == "dot" and not (is_dot and self.vw[w[1]][2] == base):
                        req(self.vw[w[1]][0], 3)
                    if w[1] in self.stw:
                        req(self.stw[w[1]], 2)
                    if w[1] in self.mfma and not is_mfma:
                        wp, passes = self.mfma[w[1]]
                        req(wp, {2: 5, 4: 8, 8: 12, 16: 20}[passes])
                    if w[1] in self.mfma_c and not is_mfma:
                        wp, passes = self.mfma_c[w[1]]
                        req(wp, {2: 1, 4: 3, 8: 7, 16: 15}[passes])
        elif is_vmem or is_ds:
            allr = []
            for o in ops:
                allr += _regs(o)
            for r in allr:
                if r[0] == "s" and r[1] in self.sw:
                    req(self.sw[r[1]], 5)
                if r[0] == "v" and r[1] in self.vw and self.vw[r[1]][1] == "dot":
                    req(self.vw[r[1]][0], 3)
                if r[0] == "v" and r[1] in self.mfma:
                    wp, passes = self.mfma[r[1]]
                    req(wp, {2: 5, 4: 8, 8: 12, 16: 20}[passes])
                if r[0] == "v" and r[1] in self.stw:
                    req(self.stw[r[1]], 1)
            if " lds" in (" " + mods) or mn.startswith("global_load_lds"):
                req(self.m0w, 1)
        else:
            for o in ops[1:] if ops else []:
                for r in _regs(o):
                    if r[0] == "s" and r[1] in self.sw:
                        req(self.sw[r[1]], 1)
        if need > self.pos:
            self._nop(need - self.pos)
        self.lines.append("    " + text)
        p = self.pos
        if mn == "s_nop":
            self.pos += int(ops[0], 0) + 1
        else:
            self.pos += 1
        if is_valu:
            kind = "dot" if base.startswith("v_dot") else ("trans" if base in TRANS else "alu")
            for w in writes:
                if w[0] == "v":
                    if is_mfma:
                        passes = 4 if "16x16x32" in base or "16x16x16" in base else (2 if "4x4x4" in base else 8)
                        self.mfma[w[1]] = (p, passes)
                        self.vw.pop(w[1], None)
                    else:
                        self.vw[w[1]] = (p, kind, base)
                        self.mfma.pop(w[1], None)
                elif w[0] == "s":
                    self.sw[w[1]] = p
            if is_mfma:
                passes = 4 if "16x16x32" in base or "16x16x16" in base else (2 if "4x4x4" in base else 8)
                for r in _regs(ops[3]):
                    if r[0] == "v":
                        self.mfma_c[r[1]] = (p, passes)
        elif is_vmem:
            if "store" in mn and ("x3" in mn or "x4" in mn):
                data = ops[0] if mn.startswith("buffer_") else ops[1]
                for r in _regs(data):
                    self.stw[r[1]] = p
        elif not is_ds:
            if ops:
                for w in _regs(ops[0]):
                    if w == ("s", 124) and mn.startswith("s_") and not mn.startswith("s_cmp"):
                        self.m0w = p
                    if w[0] == "s" and not mn.startswith(("s_cmp", "s_cbranch", "s_waitcnt")):
                        self.sw.pop(w[1], None)

    def vmem(self, text, tag):
        self(text)
        self.vm.append(tag)

    def wait_vm(self, tag):
        if tag not in self.vm:
            return
        i = self.vm.index(tag)
        n = len(self.vm) - 1 - i
        assert n <= 63, "vmcnt overflow %d" % n
        self("s_waitcnt vmcnt(%d)" % n)
        self.vm = self.vm[i + 1:]

    def wait_vm_all(self):
        self("s_waitcnt vmcnt(0)")
        self.vm = []

    def text(self):
        return "\n".join(self.lines) + "\n"
```

```python
import sys
import os
import argparse

sys.path.insert(0, os.path.dirname(os.path.abspath(__file__)))
from asmlib import Asm

NAME = "concat_heads__mha_block_cached__gqa_block_cached__decode"
HEADER = open(os.path.join(os.path.dirname(os.path.abspath(__file__)), "header.txt")).read()

LOG2E = 0x3FB8AA3B
SCALE = 0x3DB504F3
DPPF = "row_mask:0xf bank_mask:0xf"

YS_BYTES = 2 * 40 * 128 * 64
ML_OFF = YS_BYTES
WS_USED = ML_OFF + 2 * 128 * 8


def reduce_rows(a, acc):
    for e in range(4):
        a("v_permlane32_swap_b32 v%d, v%d" % (acc[e], acc[e + 4]))
    for e in range(4):
        a("v_add_f32 v%d, v%d, v%d" % (acc[e], acc[e], acc[e + 4]))
    for e in range(2):
        a("v_permlane16_swap_b32 v%d, v%d" % (acc[e], acc[e + 2]))
    for e in range(2):
        a("v_add_f32 v%d, v%d, v%d" % (acc[e], acc[e], acc[e + 2]))


def wave_allreduce(a, op, v, t):
    for pat in ("quad_perm:[1,0,3,2]", "quad_perm:[2,3,0,1]", "row_half_mirror", "row_mirror"):
        a("%s_dpp v%d, v%d, v%d %s %s" % (op, v, v, v, pat, DPPF))
    a("v_mov_b32 v%d, v%d" % (t, v))
    a("v_permlane16_swap_b32 v%d, v%d" % (v, t))
    a("%s v%d, v%d, v%d" % (op, v, v, t))
    a("v_mov_b32 v%d, v%d" % (t, v))
    a("v_permlane32_swap_b32 v%d, v%d" % (v, t))
    a("%s v%d, v%d, v%d" % (op, v, v, t))


def bcast_mac(a, acc, lo, hi, c, w):
    for j in range(4):
        a("v_dot2c_f32_bf16_dpp v%d, v%d, v%d row_newbcast:%d %s" % (acc[2 * j], lo, w + j, c, DPPF))
        a("v_dot2c_f32_bf16_dpp v%d, v%d, v%d row_newbcast:%d %s" % (acc[2 * j + 1], hi, w + j, c, DPPF))


def gen_k1(p):
    a = Asm()
    N = p.ring
    NT = " nt" if p.nt else ""
    NW = 8
    NBLK = 2048 // 64 // NW
    kname = "attn_kernel"
    a.raw(".globl %s" % kname)
    a.raw(".p2align 8")
    a.raw(".type %s,@function" % kname)
    a.raw("%s:" % kname)
    sK, sV, sWq, sWo, sX, sWs = 36, 40, 44, 48, 52, 56
    sW, sProb, sHead, sSplit, sT0, sT1, sT2 = 60, 61, 62, 63, 64, 65, 66
    sBlk, sWqOff, sWoOff = 67, 68, 69
    sM2, sM1 = 70, 72
    sLog2e, sScale = 74, 75
    sSidx = 76
    a("s_cmp_ge_u32 s2, 256")
    a("s_cbranch_scc1 L_k1_end")
    a("s_load_dwordx16 s[8:23], s[0:1], 0")
    a("s_load_dwordx8 s[24:31], s[0:1], 64")
    a("s_load_dwordx2 s[32:33], s[0:1], 96")
    vOff = [1, 2, 3, 4]
    vWq, vWo, vLane = 5, 6, 7
    vQ = 8
    acc = list(range(12, 20))
    vM, vL, vPlo, vPhi = 20, 21, 22, 23
    vT = list(range(24, 32))
    vS = list(range(32, 48))
    ring0 = 48
    W0 = ring0 + 4 * N
    W0 = (W0 + 3) // 4 * 4
    assert W0 + 128 <= 256, W0
    nvgpr = W0 + 128
    a("v_and_b32 v%d, 63, v0" % vLane)
    a("v_lshrrev_b32 v%d, 6, v0" % vT[0])
    a("v_readfirstlane_b32 s%d, v%d" % (sW, vT[0]))
    a("v_lshlrev_b32 v%d, 4, v%d" % (vOff[0], vLane))
    for k in range(1, 4):
        a("v_add_u32 v%d, %d, v%d" % (vOff[k], 4096 * k, vOff[0]))
    a("v_lshrrev_b32 v%d, 4, v%d" % (vT[0], vLane))
    a("v_and_b32 v%d, 15, v%d" % (vT[1], vLane))
    a("v_lshlrev_b32 v%d, 4, v%d" % (vT[2], vT[1]))
    a("v_lshl_add_u32 v%d, v%d, 13, v%d" % (vWq, vT[0], vT[2]))
    a("v_mul_u32_u24 v%d, 1280, v%d" % (vWo, vT[0]))
    a("v_add_u32 v%d, v%d, v%d" % (vWo, vWo, vT[2]))
    a("v_lshl_add_u32 v%d, v%d, 2, v%d" % (vT[3], vT[1], vT[0]))
    a("v_lshlrev_b32 v%d, 1, v%d" % (vT[3], vT[3]))
    a("v_and_b32 v%d, 3, v%d" % (vT[4], vT[1]))
    a("v_lshl_add_u32 v%d, v%d, 2, v%d" % (vT[4], vT[4], vT[0]))
    a("v_lshlrev_b32 v%d, 1, v%d" % (vT[4], vT[4]))
    a("s_and_b32 s%d, s2, 7" % sT0)
    a("s_lshr_b32 s%d, s2, 3" % sT1)
    a("s_and_b32 s%d, s%d, 3" % (sSplit, sT1))
    a("s_lshr_b32 s%d, s%d, 2" % (sT1, sT1))
    a("s_lshl_b32 s%d, s%d, 3" % (sT0, sT0))
    a("s_add_u32 s%d, s%d, s%d" % (sT0, sT0, sT1))
    a("s_lshr_b32 s%d, s%d, 5" % (sProb, sT0))
    a("s_and_b32 s%d, s%d, 31" % (sHead, sT0))
    a("s_lshl_b32 s%d, s%d, 2" % (sSidx, sHead))
    a("s_add_u32 s%d, s%d, s%d" % (sSidx, sSidx, sSplit))
    a("s_mov_b32 s%d, 0x%x" % (sLog2e, LOG2E))
    a("s_mov_b32 s%d, 0x%x" % (sScale, SCALE))
    a("s_mov_b32 s%d, 0xcccccccc" % sM2)
    a("s_mov_b32 s%d, 0xcccccccc" % (sM2 + 1))
    a("s_mov_b32 s%d, 0xaaaaaaaa" % sM1)
    a("s_mov_b32 s%d, 0xaaaaaaaa" % (sM1 + 1))
    a("s_lshl_b32 s%d, s%d, 19" % (sT2, sSidx))
    a("s_waitcnt lgkmcnt(0)")
    a("s_cmp_eq_u32 s%d, 0" % sProb)
    a("s_cselect_b64 s[%d:%d], s[8:9], s[18:19]" % (sX, sX + 1))
    a("s_cselect_b64 s[%d:%d], s[10:11], s[20:21]" % (sK, sK + 1))
    a("s_cselect_b64 s[%d:%d], s[12:13], s[22:23]" % (sV, sV + 1))
    a("s_cselect_b64 s[%d:%d], s[14:15], s[24:25]" % (sWq, sWq + 1))
    a("s_cselect_b64 s[%d:%d], s[16:17], s[26:27]" % (sWo, sWo + 1))
    a("s_mov_b32 s%d, 1280" % (sX + 2))
    a("s_mov_b32 s%d, 0x20000" % (sX + 3))
    a("s_mov_b32 s%d, %d" % (sWq + 2, 640 * 8192))
    a("s_mov_b32 s%d, 0x20000" % (sWq + 3))
    a("s_mul_i32 s%d, s%d, 160" % (sT0, sW))
    vXa, vXb = vT[5], vT[6]
    a.vmem("buffer_load_ushort v%d, v%d, s[%d:%d], s%d offen" % (vXa, vT[3], sX, sX + 3, sT0), "xa")
    a.vmem("buffer_load_ushort v%d, v%d, s[%d:%d], s%d offen offset:128" % (vXb, vT[4], sX, sX + 3, sT0), "xb")
    a("s_mul_i32 s%d, s%d, %d" % (sWqOff, sW, 80 * 8192))
    a("s_lshl_b32 s%d, s%d, 8" % (sT1, sHead))
    a("s_add_u32 s%d, s%d, s%d" % (sWqOff, sWqOff, sT1))
    for t in range(20):
        a.vmem("buffer_load_dwordx4 v[%d:%d], v%d, s[%d:%d], s%d offen" %
               (W0 + 4 * t, W0 + 4 * t + 3, vWq, sWq, sWq + 3, sWqOff), "wq%d" % t)
        if t != 19:
            a("s_add_u32 s%d, s%d, %d" % (sWqOff, sWqOff, 4 * 8192))
    a("s_add_u32 s%d, s%d, s%d" % (sK, sK, sT2))
    a("s_addc_u32 s%d, s%d, 0" % (sK + 1, sK + 1))
    a("s_mov_b32 s%d, 0x80000" % (sK + 2))
    a("s_mov_b32 s%d, 0x20000" % (sK + 3))
    a("s_add_u32 s%d, s%d, s%d" % (sV, sV, sT2))
    a("s_addc_u32 s%d, s%d, 0" % (sV + 1, sV + 1))
    a("s_mov_b32 s%d, 0x80000" % (sV + 2))
    a("s_mov_b32 s%d, 0x20000" % (sV + 3))
    sB0 = 80
    for b in range(NBLK):
        if p.interleave:
            a("s_lshl_b32 s%d, s%d, 14" % (sB0 + b, sW))
            if b:
                a("s_add_u32 s%d, s%d, %d" % (sB0 + b, sB0 + b, b * NW * 16384))
        else:
            a("s_lshl_b32 s%d, s%d, 16" % (sB0 + b, sW))
            if b:
                a("s_add_u32 s%d, s%d, %d" % (sB0 + b, sB0 + b, b * 16384))

    stream = []
    for b in range(NBLK):
        for c in range(16):
            stream.append(("K", b, c))
        for c in range(16):
            stream.append(("V", b, c))

    def issue(j):
        if j >= len(stream):
            return
        kind, b, c = stream[j]
        r = ring0 + 4 * (j % N)
        srd = sK if kind == "K" else sV
        a.vmem("buffer_load_dwordx4 v[%d:%d], v%d, s[%d:%d], s%d offen offset:%d%s" %
               (r, r + 3, vOff[c >> 2], srd, srd + 3, sB0 + b, (c & 3) * 1024, NT), "st%d" % j)

    for j in range(N):
        issue(j)
    a("s_mov_b32 s%d, %d" % (sWo + 2, 4096 * 1280))
    a("s_mov_b32 s%d, 0x20000" % (sWo + 3))
    a("s_mov_b32 s%d, s32" % sWs)
    a("s_mov_b32 s%d, s33" % (sWs + 1))
    a("s_mov_b32 s%d, %d" % (sWs + 2, WS_USED))
    a("s_mov_b32 s%d, 0x20000" % (sWs + 3))
    a("s_mul_i32 s%d, s%d, 163840" % (sWoOff, sHead))
    a("s_lshl_b32 s%d, s%d, 8" % (sT1, sW))
    a("s_add_u32 s%d, s%d, s%d" % (sWoOff, sWoOff, sT1))
    a("s_cmp_ge_u32 s%d, 5" % sW)
    a("s_cselect_b32 s%d, 0x40000000, s%d" % (sWoOff, sWoOff))
    for k in range(8):
        a("v_mov_b32 v%d, 0" % acc[k])
    vXah, vXbh = vT[7], vT[2]
    a.wait_vm("xb")
    a("v_lshlrev_b32 v%d, 16, v%d" % (vXah, vXa))
    a("v_lshlrev_b32 v%d, 16, v%d" % (vXbh, vXb))
    for t in range(20):
        a.wait_vm("wq%d" % t)
        if t < 16:
            bcast_mac(a, acc, vXa, vXah, t, W0 + 4 * t)
        else:
            bcast_mac(a, acc, vXb, vXbh, t - 16, W0 + 4 * t)
    reduce_rows(a, acc)
    vLdsW = vT[3]
    a("v_lshlrev_b32 v%d, 5, v%d" % (vLdsW, vT[1]))
    a("v_lshl_add_u32 v%d, v%d, 3, v%d" % (vLdsW, vT[0], vLdsW))
    a("s_lshl_b32 s%d, s%d, 9" % (sT0, sW))
    a("v_add_u32 v%d, s%d, v%d" % (vLdsW, sT0, vLdsW))
    a("ds_write_b64 v%d, v[%d:%d]" % (vLdsW, acc[0], acc[1]))
    a("v_lshlrev_b32 v%d, 5, v%d" % (vT[4], vT[1]))
    a("s_waitcnt lgkmcnt(0)")
    a("s_barrier")
    for w in range(8):
        for h in range(2):
            r = W0 + 8 * w + 4 * h
            a("ds_read_b128 v[%d:%d], v%d offset:%d" % (r, r + 3, vT[4], w * 512 + 16 * h))
    a("s_waitcnt lgkmcnt(0)")
    for w in range(1, 8):
        for e in range(8):
            a("v_add_f32 v%d, v%d, v%d" % (W0 + e, W0 + e, W0 + 8 * w + e))
    for j in range(4):
        a("v_cvt_pk_bf16_f32 v%d, v%d, v%d" % (vQ + j, W0 + 2 * j, W0 + 2 * j + 1))
    for k in range(8):
        a("v_mov_b32 v%d, 0" % acc[k])
    a("v_mov_b32 v%d, 0" % vL)

    wo_next = [0]

    def issue_wo():
        c = wo_next[0]
        if c >= 32:
            return
        r = W0 + 4 * c
        a.vmem("buffer_load_dwordx4 v[%d:%d], v%d, s[%d:%d], s%d offen" %
               (r, r + 3, vWo, sWo, sWo + 3, sWoOff), "wo%d" % c)
        a("s_add_u32 s%d, s%d, 5120" % (sWoOff, sWoOff))
        wo_next[0] += 1

    for j, (kind, b, c) in enumerate(stream):
        r = ring0 + 4 * (j % N)
        a.wait_vm("st%d" % j)
        if kind == "K":
            a("v_dot2_f32_bf16 v%d, v%d, v%d, 0" % (vS[c], r, vQ))
            for k in range(1, 4):
                a("v_dot2_f32_bf16 v%d, v%d, v%d, v%d" % (vS[c], r + k, vQ + k, vS[c]))
        else:
            bcast_mac(a, acc, vPlo, vPhi, c, r)
        issue(j + N)
        if j % p.wo_every == 0:
            issue_wo()
        if kind == "K" and c == 15:
            for cc in range(8):
                a("v_add_f32_dpp v%d, v%d, v%d row_mirror %s" % (vS[cc], vS[cc], vS[cc], DPPF))
            for cc in range(8):
                a("v_add_f32_dpp v%d, v%d, v%d row_mirror row_mask:0xf bank_mask:0xc" %
                  (vS[cc], vS[cc + 8], vS[cc + 8]))
            for cc in range(4):
                a("v_add_f32_dpp v%d, v%d, v%d row_half_mirror %s" % (vS[cc], vS[cc], vS[cc], DPPF))
            for cc in range(4):
                a("v_add_f32_dpp v%d, v%d, v%d row_half_mirror row_mask:0xf bank_mask:0xa" %
                  (vS[cc], vS[cc + 4], vS[cc + 4]))
            for cc in range(4):
                a("v_add_f32_dpp v%d, v%d, v%d quad_perm:[2,3,0,1] %s" % (vS[cc], vS[cc], vS[cc], DPPF))
            for cc in range(2):
                a("v_cndmask_b32 v%d, v%d, v%d, s[%d:%d]" % (vS[cc], vS[cc], vS[cc + 2], sM2, sM2 + 1))
            for cc in range(2):
                a("v_add_f32_dpp v%d, v%d, v%d quad_perm:[1,0,3,2] %s" % (vS[cc], vS[cc], vS[cc], DPPF))
            s = vS[0]
            a("v_cndmask_b32 v%d, v%d, v%d, s[%d:%d]" % (s, vS[0], vS[1], sM1, sM1 + 1))
            a("v_cvt_pk_bf16_f32 v%d, 0, v%d" % (s, s))
            a("v_mul_f32 v%d, s%d, v%d" % (s, sScale, s))
            a("v_cvt_pk_bf16_f32 v%d, 0, v%d" % (s, s))
            bm, tmp, al = vS[1], vS[2], vS[3]
            a("v_mov_b32 v%d, v%d" % (bm, s))
            wave_allreduce(a, "v_max_f32", bm, tmp)
            if b == 0:
                a("v_mov_b32 v%d, v%d" % (vM, bm))
            else:
                a("v_max_f32 v%d, v%d, v%d" % (bm, bm, vM))
                a("v_sub_f32 v%d, v%d, v%d" % (al, vM, bm))
                a("v_mul_f32 v%d, s%d, v%d" % (al, sLog2e, al))
                a("v_exp_f32 v%d, v%d" % (al, al))
                a("v_mov_b32 v%d, v%d" % (vM, bm))
            a("v_sub_f32 v%d, v%d, v%d" % (s, s, vM))
            a("v_mul_f32 v%d, s%d, v%d" % (s, sLog2e, s))
            a("v_exp_f32 v%d, v%d" % (s, s))
            if b != 0:
                for k in range(8):
                    a("v_mul_f32 v%d, v%d, v%d" % (acc[k], al, acc[k]))
                a("v_mul_f32 v%d, v%d, v%d" % (vL, al, vL))
            a("v_add_f32 v%d, v%d, v%d" % (vL, vL, s))
            a("v_cvt_pk_bf16_f32 v%d, v%d, 0" % (vPlo, s))
            a("v_cvt_pk_bf16_f32 v%d, 0, v%d" % (vPhi, s))
    while wo_next[0] < 32:
        issue_wo()
    reduce_rows(a, acc)
    a("ds_write_b64 v%d, v[%d:%d] offset:4096" % (vLdsW, acc[0], acc[1]))
    wave_allreduce(a, "v_add_f32", vL, vS[0])
    a("s_lshl_b32 s%d, s%d, 3" % (sT0, sW))
    a("v_mov_b32 v%d, s%d" % (vS[1], sT0))
    a("s_mov_b64 exec, 1")
    a("ds_write_b64 v%d, v[%d:%d] offset:8192" % (vS[1], vM, vL))
    a("s_mov_b64 exec, -1")
    a("v_lshlrev_b32 v%d, 4, v%d" % (vS[2], vT[1]))
    a("v_lshl_add_u32 v%d, v%d, 2, v%d" % (vS[2], vT[0], vS[2]))
    a("v_mov_b32 v%d, 0" % vS[3])
    a("s_waitcnt lgkmcnt(0)")
    a("s_barrier")
    a("s_cmp_ge_u32 s%d, 5" % sW)
    a("s_cbranch_scc1 L_k1_end")
    ml = ring0
    ov = ring0 + 16
    for k in range(4):
        a("ds_read_b128 v[%d:%d], v%d offset:%d" % (ml + 4 * k, ml + 4 * k + 3, vS[3], 8192 + 16 * k))
    for w in range(8):
        a("ds_read2st64_b32 v[%d:%d], v%d offset0:%d offset1:%d" %
          (ov + 2 * w, ov + 2 * w + 1, vS[2], 16 + 2 * w, 16 + 2 * w + 1))
    a("s_waitcnt lgkmcnt(8)")
    a("v_max3_f32 v%d, v%d, v%d, v%d" % (vM, ml, ml + 2, ml + 4))
    a("v_max3_f32 v%d, v%d, v%d, v%d" % (vM, vM, ml + 6, ml + 8))
    a("v_max3_f32 v%d, v%d, v%d, v%d" % (vM, vM, ml + 10, ml + 12))
    a("v_max_f32 v%d, v%d, v%d" % (vM, vM, ml + 14))
    for w in range(8):
        a("v_sub_f32 v%d, v%d, v%d" % (ml + 2 * w, ml + 2 * w, vM))
    for w in range(8):
        a("v_mul_f32 v%d, s%d, v%d" % (ml + 2 * w, sLog2e, ml + 2 * w))
    for w in range(8):
        a("v_exp_f32 v%d, v%d" % (ml + 2 * w, ml + 2 * w))
    a("s_waitcnt lgkmcnt(0)")
    oA, oB = vS[4], vS[5]
    a("v_mul_f32 v%d, v%d, v%d" % (oA, ml, ov))
    a("v_mul_f32 v%d, v%d, v%d" % (oB, ml, ov + 1))
    a("v_mul_f32 v%d, v%d, v%d" % (vL, ml, ml + 1))
    for w in range(1, 8):
        a("v_fmac_f32 v%d, v%d, v%d" % (oA, ml + 2 * w, ov + 2 * w))
        a("v_fmac_f32 v%d, v%d, v%d" % (oB, ml + 2 * w, ov + 2 * w + 1))
        a("v_fmac_f32 v%d, v%d, v%d" % (vL, ml + 2 * w, ml + 2 * w + 1))
    loA, hiA, loB, hiB = vS[6], vS[7], vS[8], vS[9]
    a("v_cvt_pk_bf16_f32 v%d, v%d, 0" % (loA, oA))
    a("v_cvt_pk_bf16_f32 v%d, 0, v%d" % (hiA, oA))
    a("v_cvt_pk_bf16_f32 v%d, v%d, 0" % (loB, oB))
    a("v_cvt_pk_bf16_f32 v%d, 0, v%d" % (hiB, oB))
    for k in range(8):
        a("v_mov_b32 v%d, 0" % acc[k])
    a.wait_vm("wo31")
    for c in range(32):
        if c < 16:
            bcast_mac(a, acc, loA, hiA, c, W0 + 4 * c)
        else:
            bcast_mac(a, acc, loB, hiB, c - 16, W0 + 4 * c)
    reduce_rows(a, acc)
    a("v_lshrrev_b32 v%d, 1, v%d" % (vS[10], vT[1]))
    a("v_lshlrev_b32 v%d, 13, v%d" % (vS[10], vS[10]))
    a("v_and_b32 v%d, 1, v%d" % (vS[11], vT[1]))
    a("v_lshl_add_u32 v%d, v%d, 5, v%d" % (vS[10], vS[11], vS[10]))
    a("v_lshl_add_u32 v%d, v%d, 3, v%d" % (vS[10], vT[0], vS[10]))
    a("s_mul_i32 s%d, s%d, 40" % (sT0, sProb))
    a("s_lshl_b32 s%d, s%d, 3" % (sT1, sW))
    a("s_add_u32 s%d, s%d, s%d" % (sT0, sT0, sT1))
    a("s_lshl_b32 s%d, s%d, 7" % (sT0, sT0))
    a("s_add_u32 s%d, s%d, s%d" % (sT0, sT0, sSidx))
    a("s_lshl_b32 s%d, s%d, 6" % (sT0, sT0))
    a("buffer_store_dwordx2 v[%d:%d], v%d, s[%d:%d], s%d offen" % (acc[0], acc[1], vS[10], sWs, sWs + 3, sT0))
    a("s_cmp_lg_u32 s%d, 0" % sW)
    a("s_cbranch_scc1 L_k1_end")
    a("s_lshl_b32 s%d, s%d, 7" % (sT0, sProb))
    a("s_add_u32 s%d, s%d, s%d" % (sT0, sT0, sSidx))
    a("s_lshl_b32 s%d, s%d, 3" % (sT0, sT0))
    a("s_add_u32 s%d, s%d, %d" % (sT0, sT0, ML_OFF))
    a("s_mov_b64 exec, 1")
    a("buffer_store_dwordx2 v[%d:%d], v%d, s[%d:%d], s%d offen" % (vM, vL, vS[3], sWs, sWs + 3, sT0))
    a.raw("L_k1_end:")
    a("s_endpgm")
    return a, kname, nvgpr


def gen_k2(p):
    a = Asm()
    kname = "reduce_kernel"
    a.raw(".globl %s" % kname)
    a.raw(".p2align 8")
    a.raw(".type %s,@function" % kname)
    a.raw("%s:" % kname)
    a("s_cmp_ge_u32 s2, 80")
    a("s_cbranch_scc1 L_k2_end")
    a("s_load_dwordx2 s[4:5], s[0:1], 80")
    a("s_load_dwordx2 s[8:9], s[0:1], 96")
    a("v_lshlrev_b32 v1, 4, v0")
    a("v_lshrrev_b32 v2, 2, v0")
    a("v_lshlrev_b32 v2, 3, v2")
    a("s_lshl_b32 s12, s2, 13")
    a("s_cmp_ge_u32 s2, 40")
    a("s_cselect_b32 s13, 1024, 0")
    a("s_add_u32 s13, s13, %d" % ML_OFF)
    a("s_mov_b32 s14, 0x%x" % LOG2E)
    a("s_mov_b32 s6, 2560")
    a("s_mov_b32 s7, 0x20000")
    a("s_mov_b32 s10, %d" % WS_USED)
    a("s_mov_b32 s11, 0x20000")
    a("s_add_u32 s15, s12, 4096")
    a("s_waitcnt lgkmcnt(0)")
    ML, Y = 8, 24
    for k in range(8):
        a.vmem("buffer_load_dwordx2 v[%d:%d], v2, s[8:11], s13 offen offset:%d" % (ML + 2 * k, ML + 2 * k + 1, 128 * k),
               "ml%d" % k)
    for k in range(8):
        a.vmem("buffer_load_dwordx4 v[%d:%d], v1, s[8:11], s%d offen offset:%d" %
               (Y + 4 * k, Y + 4 * k + 3, 12 if k < 4 else 15, 1024 * (k & 3)), "y%d" % k)
    T = 56
    a.wait_vm("ml7")
    for k in range(8):
        a("v_max_f32_dpp v%d, v%d, v%d row_half_mirror %s" % (T + k, ML + 2 * k, ML + 2 * k, DPPF))
    for k in range(8):
        a("v_max_f32_dpp v%d, v%d, v%d row_mirror %s" % (T + k, T + k, T + k, DPPF))
    for k in range(8):
        a("v_sub_f32 v%d, v%d, v%d" % (T + k, ML + 2 * k, T + k))
    for k in range(8):
        a("v_mul_f32 v%d, s14, v%d" % (T + k, T + k))
    for k in range(8):
        a("v_exp_f32 v%d, v%d" % (T + k, T + k))
    for k in range(8):
        a("v_mul_f32 v%d, v%d, v%d" % (T + 8 + k, T + k, ML + 2 * k + 1))
    for k in range(8):
        a("v_add_f32_dpp v%d, v%d, v%d row_half_mirror %s" % (T + 8 + k, T + 8 + k, T + 8 + k, DPPF))
    for k in range(8):
        a("v_add_f32_dpp v%d, v%d, v%d row_mirror %s" % (T + 8 + k, T + 8 + k, T + 8 + k, DPPF))
    for k in range(8):
        a("v_rcp_f32 v%d, v%d" % (T + 8 + k, T + 8 + k))
    for k in range(8):
        a("v_mul_f32 v%d, v%d, v%d" % (T + k, T + k, T + 8 + k))
    for k in range(8):
        a.wait_vm("y%d" % k)
        for e in range(4):
            if k == 0:
                a("v_mul_f32 v%d, v%d, v%d" % (4 + e, T, Y + e))
            else:
                a("v_fmac_f32 v%d, v%d, v%d" % (4 + e, T + k, Y + 4 * k + e))
    for e in range(4):
        a("v_add_f32_dpp v%d, v%d, v%d row_ror:4 %s" % (4 + e, 4 + e, 4 + e, DPPF))
    for e in range(4):
        a("v_add_f32_dpp v%d, v%d, v%d row_ror:8 %s" % (4 + e, 4 + e, 4 + e, DPPF))
    for e in range(4):
        a("v_mov_b32 v%d, v%d" % (8 + e, 4 + e))
    for e in range(4):
        a("v_permlane16_swap_b32 v%d, v%d" % (4 + e, 8 + e))
    for e in range(4):
        a("v_add_f32 v%d, v%d, v%d" % (4 + e, 4 + e, 8 + e))
    for e in range(4):
        a("v_mov_b32 v%d, v%d" % (8 + e, 4 + e))
    for e in range(4):
        a("v_permlane32_swap_b32 v%d, v%d" % (4 + e, 8 + e))
    for e in range(4):
        a("v_add_f32 v%d, v%d, v%d" % (4 + e, 4 + e, 8 + e))
    a("v_cvt_pk_bf16_f32 v4, v4, v5")
    a("v_cvt_pk_bf16_f32 v5, v6, v7")
    a("v_lshlrev_b32 v1, 3, v0")
    a("s_lshl_b32 s12, s2, 5")
    a("s_mov_b64 exec, 15")
    a("buffer_store_dwordx2 v[4:5], v1, s[4:7], s12 offen")
    a.raw("L_k2_end:")
    a("s_endpgm")
    return a, kname, 72


def desc(kname, nvgpr, nsgpr=96):
    acc = (nvgpr + 3) // 4 * 4
    return """.amdhsa_kernel %s
  .amdhsa_next_free_vgpr %d
  .amdhsa_next_free_sgpr %d
  .amdhsa_accum_offset %d
  .amdhsa_group_segment_fixed_size 0
  .amdhsa_kernarg_size 104
  .amdhsa_user_sgpr_count 2
  .amdhsa_user_sgpr_kernarg_segment_ptr 1
  .amdhsa_system_sgpr_workgroup_id_x 1
.end_amdhsa_kernel
""" % (kname, nvgpr, nsgpr, acc)


def main():
    ap = argparse.ArgumentParser()
    ap.add_argument("--ring", type=int, default=16)
    ap.add_argument("--nt", type=int, default=1)
    ap.add_argument("--interleave", type=int, default=1)
    ap.add_argument("--wo_every", type=int, default=3)
    ap.add_argument("-o", default="cdna_kernels/%s.s" % NAME)
    p = ap.parse_args()
    k1, n1, v1 = gen_k1(p)
    k2, n2, v2 = gen_k2(p)
    out = HEADER
    out += "; @launch kernel=%s grid=(256,1,1) block=(512,1,1) lds=8448\n" % n1
    out += "; @launch kernel=%s grid=(80,1,1) block=(64,1,1) lds=0\n" % n2
    out += '.amdgcn_target "amdgcn-amd-amdhsa--gfx950"\n.text\n'
    out += k1.text() + k2.text()
    out += '.section .rodata,"a"\n.p2align 6\n' + desc(n1, v1) + ".p2align 6\n" + desc(n2, v2)
    open(p.o, "w").write(out)
    print("wrote", p.o, "k1 vgprs", v1, "nops", k1.nops, k2.nops)


if __name__ == "__main__":
    main()
```

```python
import sys
import os
import argparse

sys.path.insert(0, os.path.dirname(os.path.abspath(__file__)))
from asmlib import Asm

NAME = "concat_heads__mha_block_cached__gqa_block_cached__decode"
HEADER = open(os.path.join(os.path.dirname(os.path.abspath(__file__)), "header.txt")).read()

LOG2E = 0x3FB8AA3B
SCALE = 0x3DB504F3
DPPF = "row_mask:0xf bank_mask:0xf"

YS_BYTES = 2 * 40 * 128 * 64
ML_OFF = YS_BYTES
WS_USED = ML_OFF + 2 * 128 * 8


def reduce_rows(a, acc):
    for e in range(4):
        a("v_permlane32_swap_b32 v%d, v%d" % (acc[e], acc[e + 4]))
    for e in range(4):
        a("v_add_f32 v%d, v%d, v%d" % (acc[e], acc[e], acc[e + 4]))
    for e in range(2):
        a("v_permlane16_swap_b32 v%d, v%d" % (acc[e], acc[e + 2]))
    for e in range(2):
        a("v_add_f32 v%d, v%d, v%d" % (acc[e], acc[e], acc[e + 2]))


def wave_allreduce(a, op, v, t):
    for pat in ("quad_perm:[1,0,3,2]", "quad_perm:[2,3,0,1]", "row_half_mirror", "row_mirror"):
        a("%s_dpp v%d, v%d, v%d %s %s" % (op, v, v, v, pat, DPPF))
    a("v_mov_b32 v%d, v%d" % (t, v))
    a("v_permlane16_swap_b32 v%d, v%d" % (v, t))
    a("%s v%d, v%d, v%d" % (op, v, v, t))
    a("v_mov_b32 v%d, v%d" % (t, v))
    a("v_permlane32_swap_b32 v%d, v%d" % (v, t))
    a("%s v%d, v%d, v%d" % (op, v, v, t))


def bcast_mac(a, acc, lo, hi, c, w):
    for j in range(4):
        a("v_dot2c_f32_bf16_dpp v%d, v%d, v%d row_newbcast:%d %s" % (acc[2 * j], lo, w + j, c, DPPF))
        a("v_dot2c_f32_bf16_dpp v%d, v%d, v%d row_newbcast:%d %s" % (acc[2 * j + 1], hi, w + j, c, DPPF))


STAMP_OFF = 4 << 20
NSTAMP = 8


def stamp(a, p, idx):
    if p.stamps:
        a("s_memrealtime s[%d:%d]" % (84 + 2 * idx, 85 + 2 * idx))


def stamp_store(a, p, n0, n1, swgs, vz, vt):
    if not p.stamps:
        return
    a("s_waitcnt lgkmcnt(0)")
    a("s_mov_b32 s4, s32")
    a("s_mov_b32 s5, s33")
    a("s_mov_b32 s6, 0x%x" % (STAMP_OFF + (1 << 20)))
    a("s_mov_b32 s7, 0x20000")
    a("s_lshl_b32 s3, s%d, 6" % swgs)
    a("s_add_u32 s3, s3, 0x%x" % STAMP_OFF)
    a("v_mov_b32 v%d, 0" % vz)
    for i in range(n0, n1):
        a("v_mov_b32 v%d, s%d" % (vt, 84 + 2 * i))
        a("v_mov_b32 v%d, s%d" % (vt + 1, 85 + 2 * i))
        a("buffer_store_dwordx2 v[%d:%d], v%d, s[4:7], s3 offen offset:%d" % (vt, vt + 1, vz, 8 * i))
        a("s_nop 4")


def gen_k1(p):
    a = Asm()
    N = p.ring
    NT = " nt" if p.nt else ""
    NW = 8
    NBLK = 2048 // 64 // NW
    kname = "attn_kernel"
    a.raw(".globl %s" % kname)
    a.raw(".p2align 8")
    a.raw(".type %s,@function" % kname)
    a.raw("%s:" % kname)
    sK, sV, sWq, sWo, sX, sWs = 36, 40, 44, 48, 52, 56
    sW, sProb, sHead, sSplit, sT0, sT1, sT2 = 60, 61, 62, 63, 64, 65, 66
    sBlk, sWqOff, sWoOff = 67, 68, 69
    sM2, sM1 = 70, 72
    sLog2e, sScale = 74, 75
    sSidx = 76
    a("s_cmp_ge_u32 s2, 256")
    a("s_cbranch_scc1 L_k1_end")
    stamp(a, p, 0)
    a("s_load_dwordx16 s[8:23], s[0:1], 0")
    a("s_load_dwordx8 s[24:31], s[0:1], 64")
    a("s_load_dwordx2 s[32:33], s[0:1], 96")
    vOff = [1, 2, 3, 4]
    vWq, vWo, vLane = 5, 6, 7
    vQ = 8
    acc = list(range(12, 20))
    vM, vL, vPlo, vPhi = 20, 21, 22, 23
    vT = list(range(24, 32))
    vS = list(range(32, 48))
    ring0 = 48
    W0 = ring0 + 4 * N
    W0 = (W0 + 3) // 4 * 4
    assert W0 + 128 <= 256, W0
    nvgpr = W0 + 128
    a("v_and_b32 v%d, 63, v0" % vLane)
    a("v_lshrrev_b32 v%d, 6, v0" % vT[0])
    a("v_readfirstlane_b32 s%d, v%d" % (sW, vT[0]))
    a("v_lshlrev_b32 v%d, 4, v%d" % (vOff[0], vLane))
    for k in range(1, 4):
        a("v_add_u32 v%d, %d, v%d" % (vOff[k], 4096 * k, vOff[0]))
    a("v_lshrrev_b32 v%d, 4, v%d" % (vT[0], vLane))
    a("v_and_b32 v%d, 15, v%d" % (vT[1], vLane))
    a("v_lshlrev_b32 v%d, 4, v%d" % (vT[2], vT[1]))
    a("v_lshl_add_u32 v%d, v%d, 13, v%d" % (vWq, vT[0], vT[2]))
    a("v_mul_u32_u24 v%d, 1280, v%d" % (vWo, vT[0]))
    a("v_add_u32 v%d, v%d, v%d" % (vWo, vWo, vT[2]))
    a("v_lshl_add_u32 v%d, v%d, 2, v%d" % (vT[3], vT[1], vT[0]))
    a("v_lshlrev_b32 v%d, 1, v%d" % (vT[3], vT[3]))
    a("v_and_b32 v%d, 3, v%d" % (vT[4], vT[1]))
    a("v_lshl_add_u32 v%d, v%d, 2, v%d" % (vT[4], vT[4], vT[0]))
    a("v_lshlrev_b32 v%d, 1, v%d" % (vT[4], vT[4]))
    a("s_and_b32 s%d, s2, 7" % sT0)
    a("s_lshr_b32 s%d, s2, 3" % sT1)
    a("s_and_b32 s%d, s%d, 3" % (sSplit, sT1))
    a("s_lshr_b32 s%d, s%d, 2" % (sT1, sT1))
    a("s_lshl_b32 s%d, s%d, 3" % (sT0, sT0))
    a("s_add_u32 s%d, s%d, s%d" % (sT0, sT0, sT1))
    a("s_lshr_b32 s%d, s%d, 5" % (sProb, sT0))
    a("s_and_b32 s%d, s%d, 31" % (sHead, sT0))
    a("s_lshl_b32 s%d, s%d, 2" % (sSidx, sHead))
    a("s_add_u32 s%d, s%d, s%d" % (sSidx, sSidx, sSplit))
    a("s_mov_b32 s%d, 0x%x" % (sLog2e, LOG2E))
    a("s_mov_b32 s%d, 0x%x" % (sScale, SCALE))
    a("s_mov_b32 s%d, 0xcccccccc" % sM2)
    a("s_mov_b32 s%d, 0xcccccccc" % (sM2 + 1))
    a("s_mov_b32 s%d, 0xaaaaaaaa" % sM1)
    a("s_mov_b32 s%d, 0xaaaaaaaa" % (sM1 + 1))
    a("s_lshl_b32 s%d, s%d, 19" % (sT2, sSidx))
    a("s_waitcnt lgkmcnt(0)")
    a("s_cmp_eq_u32 s%d, 0" % sProb)
    a("s_cselect_b64 s[%d:%d], s[8:9], s[18:19]" % (sX, sX + 1))
    a("s_cselect_b64 s[%d:%d], s[10:11], s[20:21]" % (sK, sK + 1))
    a("s_cselect_b64 s[%d:%d], s[12:13], s[22:23]" % (sV, sV + 1))
    a("s_cselect_b64 s[%d:%d], s[14:15], s[24:25]" % (sWq, sWq + 1))
    a("s_cselect_b64 s[%d:%d], s[16:17], s[26:27]" % (sWo, sWo + 1))
    a("s_mov_b32 s%d, 1280" % (sX + 2))
    a("s_mov_b32 s%d, 0x20000" % (sX + 3))
    a("s_mov_b32 s%d, %d" % (sWq + 2, 640 * 8192))
    a("s_mov_b32 s%d, 0x20000" % (sWq + 3))
    a("s_mul_i32 s%d, s%d, 160" % (sT0, sW))
    vXa, vXb = vT[5], vT[6]
    a.vmem("buffer_load_ushort v%d, v%d, s[%d:%d], s%d offen" % (vXa, vT[3], sX, sX + 3, sT0), "xa")
    a.vmem("buffer_load_ushort v%d, v%d, s[%d:%d], s%d offen offset:128" % (vXb, vT[4], sX, sX + 3, sT0), "xb")
    a("s_mul_i32 s%d, s%d, %d" % (sWqOff, sW, 80 * 8192))
    a("s_lshl_b32 s%d, s%d, 8" % (sT1, sHead))
    a("s_add_u32 s%d, s%d, s%d" % (sWqOff, sWqOff, sT1))
    for t in range(20):
        a.vmem("buffer_load_dwordx4 v[%d:%d], v%d, s[%d:%d], s%d offen" %
               (W0 + 4 * t, W0 + 4 * t + 3, vWq, sWq, sWq + 3, sWqOff), "wq%d" % t)
        if t != 19:
            a("s_add_u32 s%d, s%d, %d" % (sWqOff, sWqOff, 4 * 8192))
    a("s_add_u32 s%d, s%d, s%d" % (sK, sK, sT2))
    a("s_addc_u32 s%d, s%d, 0" % (sK + 1, sK + 1))
    a("s_mov_b32 s%d, 0x80000" % (sK + 2))
    a("s_mov_b32 s%d, 0x20000" % (sK + 3))
    a("s_add_u32 s%d, s%d, s%d" % (sV, sV, sT2))
    a("s_addc_u32 s%d, s%d, 0" % (sV + 1, sV + 1))
    a("s_mov_b32 s%d, 0x80000" % (sV + 2))
    a("s_mov_b32 s%d, 0x20000" % (sV + 3))
    sB0 = 80
    for b in range(NBLK):
        if p.interleave:
            a("s_lshl_b32 s%d, s%d, 14" % (sB0 + b, sW))
            if b:
                a("s_add_u32 s%d, s%d, %d" % (sB0 + b, sB0 + b, b * NW * 16384))
        else:
            a("s_lshl_b32 s%d, s%d, 16" % (sB0 + b, sW))
            if b:
                a("s_add_u32 s%d, s%d, %d" % (sB0 + b, sB0 + b, b * 16384))

    stream = []
    for b in range(NBLK):
        for c in range(16):
            stream.append(("K", b, c))
        for c in range(16):
            stream.append(("V", b, c))

    def issue(j):
        if j >= len(stream):
            return
        kind, b, c = stream[j]
        r = ring0 + 4 * (j % N)
        srd = sK if kind == "K" else sV
        a.vmem("buffer_load_dwordx4 v[%d:%d], v%d, s[%d:%d], s%d offen offset:%d%s" %
               (r, r + 3, vOff[c >> 2], srd, srd + 3, sB0 + b, (c & 3) * 1024, NT), "st%d" % j)

    for j in range(N):
        issue(j)
    a("s_mov_b32 s%d, %d" % (sWo + 2, 4096 * 1280))
    a("s_mov_b32 s%d, 0x20000" % (sWo + 3))
    a("s_mov_b32 s%d, s32" % sWs)
    a("s_mov_b32 s%d, s33" % (sWs + 1))
    a("s_mov_b32 s%d, %d" % (sWs + 2, WS_USED))
    a("s_mov_b32 s%d, 0x20000" % (sWs + 3))
    a("s_mul_i32 s%d, s%d, 163840" % (sWoOff, sHead))
    a("s_lshl_b32 s%d, s%d, 8" % (sT1, sW))
    a("s_add_u32 s%d, s%d, s%d" % (sWoOff, sWoOff, sT1))
    a("s_cmp_ge_u32 s%d, 5" % sW)
    a("s_cselect_b32 s%d, 0x40000000, s%d" % (sWoOff, sWoOff))
    for k in range(8):
        a("v_mov_b32 v%d, 0" % acc[k])
    stamp(a, p, 1)
    vXah, vXbh = vT[7], vT[2]
    a.wait_vm("xb")
    a("v_lshlrev_b32 v%d, 16, v%d" % (vXah, vXa))
    a("v_lshlrev_b32 v%d, 16, v%d" % (vXbh, vXb))
    for t in range(20):
        a.wait_vm("wq%d" % t)
        if t < 16:
            bcast_mac(a, acc, vXa, vXah, t, W0 + 4 * t)
        else:
            bcast_mac(a, acc, vXb, vXbh, t - 16, W0 + 4 * t)
    reduce_rows(a, acc)
    vLdsW = vT[3]
    a("v_lshlrev_b32 v%d, 5, v%d" % (vLdsW, vT[1]))
    a("v_lshl_add_u32 v%d, v%d, 3, v%d" % (vLdsW, vT[0], vLdsW))
    a("s_lshl_b32 s%d, s%d, 9" % (sT0, sW))
    a("v_add_u32 v%d, s%d, v%d" % (vLdsW, sT0, vLdsW))
    a("ds_write_b64 v%d, v[%d:%d]" % (vLdsW, acc[0], acc[1]))
    a("v_lshlrev_b32 v%d, 5, v%d" % (vT[4], vT[1]))
    a("s_waitcnt lgkmcnt(0)")
    a("s_barrier")
    for w in range(8):
        for h in range(2):
            r = W0 + 8 * w + 4 * h
            a("ds_read_b128 v[%d:%d], v%d offset:%d" % (r, r + 3, vT[4], w * 512 + 16 * h))
    a("s_waitcnt lgkmcnt(0)")
    for w in range(1, 8):
        for e in range(8):
            a("v_add_f32 v%d, v%d, v%d" % (W0 + e, W0 + e, W0 + 8 * w + e))
    for j in range(4):
        a("v_cvt_pk_bf16_f32 v%d, v%d, v%d" % (vQ + j, W0 + 2 * j, W0 + 2 * j + 1))
    for k in range(8):
        a("v_mov_b32 v%d, 0" % acc[k])
    a("v_mov_b32 v%d, 0" % vL)

    stamp(a, p, 2)
    wo_next = [0]

    def issue_wo():
        c = wo_next[0]
        if c >= 32:
            return
        r = W0 + 4 * c
        a.vmem("buffer_load_dwordx4 v[%d:%d], v%d, s[%d:%d], s%d offen" %
               (r, r + 3, vWo, sWo, sWo + 3, sWoOff), "wo%d" % c)
        a("s_add_u32 s%d, s%d, 5120" % (sWoOff, sWoOff))
        wo_next[0] += 1

    for j, (kind, b, c) in enumerate(stream):
        r = ring0 + 4 * (j % N)
        a.wait_vm("st%d" % j)
        if kind == "K":
            a("v_dot2_f32_bf16 v%d, v%d, v%d, 0" % (vS[c], r, vQ))
            for k in range(1, 4):
                a("v_dot2_f32_bf16 v%d, v%d, v%d, v%d" % (vS[c], r + k, vQ + k, vS[c]))
        else:
            bcast_mac(a, acc, vPlo, vPhi, c, r)
        issue(j + N)
        if j % p.wo_every == 0:
            issue_wo()
        if kind == "K" and c == 15:
            for cc in range(8):
                a("v_add_f32_dpp v%d, v%d, v%d row_mirror %s" % (vS[cc], vS[cc], vS[cc], DPPF))
            for cc in range(8):
                a("v_add_f32_dpp v%d, v%d, v%d row_mirror row_mask:0xf bank_mask:0xc" %
                  (vS[cc], vS[cc + 8], vS[cc + 8]))
            for cc in range(4):
                a("v_add_f32_dpp v%d, v%d, v%d row_half_mirror %s" % (vS[cc], vS[cc], vS[cc], DPPF))
            for cc in range(4):
                a("v_add_f32_dpp v%d, v%d, v%d row_half_mirror row_mask:0xf bank_mask:0xa" %
                  (vS[cc], vS[cc + 4], vS[cc + 4]))
            for cc in range(4):
                a("v_add_f32_dpp v%d, v%d, v%d quad_perm:[2,3,0,1] %s" % (vS[cc], vS[cc], vS[cc], DPPF))
            for cc in range(2):
                a("v_cndmask_b32 v%d, v%d, v%d, s[%d:%d]" % (vS[cc], vS[cc], vS[cc + 2], sM2, sM2 + 1))
            for cc in range(2):
                a("v_add_f32_dpp v%d, v%d, v%d quad_perm:[1,0,3,2] %s" % (vS[cc], vS[cc], vS[cc], DPPF))
            s = vS[0]
            a("v_cndmask_b32 v%d, v%d, v%d, s[%d:%d]" % (s, vS[0], vS[1], sM1, sM1 + 1))
            a("v_cvt_pk_bf16_f32 v%d, 0, v%d" % (s, s))
            a("v_mul_f32 v%d, s%d, v%d" % (s, sScale, s))
            a("v_cvt_pk_bf16_f32 v%d, 0, v%d" % (s, s))
            bm, tmp, al = vS[1], vS[2], vS[3]
            a("v_mov_b32 v%d, v%d" % (bm, s))
            wave_allreduce(a, "v_max_f32", bm, tmp)
            if b == 0:
                a("v_mov_b32 v%d, v%d" % (vM, bm))
            else:
                a("v_max_f32 v%d, v%d, v%d" % (bm, bm, vM))
                a("v_sub_f32 v%d, v%d, v%d" % (al, vM, bm))
                a("v_mul_f32 v%d, s%d, v%d" % (al, sLog2e, al))
                a("v_exp_f32 v%d, v%d" % (al, al))
                a("v_mov_b32 v%d, v%d" % (vM, bm))
            a("v_sub_f32 v%d, v%d, v%d" % (s, s, vM))
            a("v_mul_f32 v%d, s%d, v%d" % (s, sLog2e, s))
            a("v_exp_f32 v%d, v%d" % (s, s))
            if b != 0:
                for k in range(8):
                    a("v_mul_f32 v%d, v%d, v%d" % (acc[k], al, acc[k]))
                a("v_mul_f32 v%d, v%d, v%d" % (vL, al, vL))
            a("v_add_f32 v%d, v%d, v%d" % (vL, vL, s))
            a("v_cvt_pk_bf16_f32 v%d, v%d, 0" % (vPlo, s))
            a("v_cvt_pk_bf16_f32 v%d, 0, v%d" % (vPhi, s))
    while wo_next[0] < 32:
        issue_wo()
    stamp(a, p, 3)
    reduce_rows(a, acc)
    a("ds_write_b64 v%d, v[%d:%d] offset:4096" % (vLdsW, acc[0], acc[1]))
    wave_allreduce(a, "v_add_f32", vL, vS[0])
    a("s_lshl_b32 s%d, s%d, 3" % (sT0, sW))
    a("v_mov_b32 v%d, s%d" % (vS[1], sT0))
    a("s_mov_b64 exec, 1")
    a("ds_write_b64 v%d, v[%d:%d] offset:8192" % (vS[1], vM, vL))
    a("s_mov_b64 exec, -1")
    a("v_lshlrev_b32 v%d, 4, v%d" % (vS[2], vT[1]))
    a("v_lshl_add_u32 v%d, v%d, 2, v%d" % (vS[2], vT[0], vS[2]))
    a("v_mov_b32 v%d, 0" % vS[3])
    a("s_waitcnt lgkmcnt(0)")
    a("s_barrier")
    a("s_cmp_ge_u32 s%d, 5" % sW)
    a("s_cbranch_scc1 L_k1_end")
    stamp(a, p, 4)
    ml = ring0
    ov = ring0 + 16
    for k in range(4):
        a("ds_read_b128 v[%d:%d], v%d offset:%d" % (ml + 4 * k, ml + 4 * k + 3, vS[3], 8192 + 16 * k))
    for w in range(8):
        a("ds_read2st64_b32 v[%d:%d], v%d offset0:%d offset1:%d" %
          (ov + 2 * w, ov + 2 * w + 1, vS[2], 16 + 2 * w, 16 + 2 * w + 1))
    a("s_waitcnt lgkmcnt(8)")
    a("v_max3_f32 v%d, v%d, v%d, v%d" % (vM, ml, ml + 2, ml + 4))
    a("v_max3_f32 v%d, v%d, v%d, v%d" % (vM, vM, ml + 6, ml + 8))
    a("v_max3_f32 v%d, v%d, v%d, v%d" % (vM, vM, ml + 10, ml + 12))
    a("v_max_f32 v%d, v%d, v%d" % (vM, vM, ml + 14))
    for w in range(8):
        a("v_sub_f32 v%d, v%d, v%d" % (ml + 2 * w, ml + 2 * w, vM))
    for w in range(8):
        a("v_mul_f32 v%d, s%d, v%d" % (ml + 2 * w, sLog2e, ml + 2 * w))
    for w in range(8):
        a("v_exp_f32 v%d, v%d" % (ml + 2 * w, ml + 2 * w))
    a("s_waitcnt lgkmcnt(0)")
    oA, oB = vS[4], vS[5]
    a("v_mul_f32 v%d, v%d, v%d" % (oA, ml, ov))
    a("v_mul_f32 v%d, v%d, v%d" % (oB, ml, ov + 1))
    a("v_mul_f32 v%d, v%d, v%d" % (vL, ml, ml + 1))
    for w in range(1, 8):
        a("v_fmac_f32 v%d, v%d, v%d" % (oA, ml + 2 * w, ov + 2 * w))
        a("v_fmac_f32 v%d, v%d, v%d" % (oB, ml + 2 * w, ov + 2 * w + 1))
        a("v_fmac_f32 v%d, v%d, v%d" % (vL, ml + 2 * w, ml + 2 * w + 1))
    loA, hiA, loB, hiB = vS[6], vS[7], vS[8], vS[9]
    a("v_cvt_pk_bf16_f32 v%d, v%d, 0" % (loA, oA))
    a("v_cvt_pk_bf16_f32 v%d, 0, v%d" % (hiA, oA))
    a("v_cvt_pk_bf16_f32 v%d, v%d, 0" % (loB, oB))
    a("v_cvt_pk_bf16_f32 v%d, 0, v%d" % (hiB, oB))
    for k in range(8):
        a("v_mov_b32 v%d, 0" % acc[k])
    a.wait_vm("wo31")
    for c in range(32):
        if c < 16:
            bcast_mac(a, acc, loA, hiA, c, W0 + 4 * c)
        else:
            bcast_mac(a, acc, loB, hiB, c - 16, W0 + 4 * c)
    reduce_rows(a, acc)
    a("v_lshrrev_b32 v%d, 1, v%d" % (vS[10], vT[1]))
    a("v_lshlrev_b32 v%d, 13, v%d" % (vS[10], vS[10]))
    a("v_and_b32 v%d, 1, v%d" % (vS[11], vT[1]))
    a("v_lshl_add_u32 v%d, v%d, 5, v%d" % (vS[10], vS[11], vS[10]))
    a("v_lshl_add_u32 v%d, v%d, 3, v%d" % (vS[10], vT[0], vS[10]))
    a("s_mul_i32 s%d, s%d, 40" % (sT0, sProb))
    a("s_lshl_b32 s%d, s%d, 3" % (sT1, sW))
    a("s_add_u32 s%d, s%d, s%d" % (sT0, sT0, sT1))
    a("s_lshl_b32 s%d, s%d, 7" % (sT0, sT0))
    a("s_add_u32 s%d, s%d, s%d" % (sT0, sT0, sSidx))
    a("s_lshl_b32 s%d, s%d, 6" % (sT0, sT0))
    a("buffer_store_dwordx2 v[%d:%d], v%d, s[%d:%d], s%d offen" % (acc[0], acc[1], vS[10], sWs, sWs + 3, sT0))
    a("s_cmp_lg_u32 s%d, 0" % sW)
    a("s_cbranch_scc1 L_k1_end")
    a("s_lshl_b32 s%d, s%d, 7" % (sT0, sProb))
    a("s_add_u32 s%d, s%d, s%d" % (sT0, sT0, sSidx))
    a("s_lshl_b32 s%d, s%d, 3" % (sT0, sT0))
    a("s_add_u32 s%d, s%d, %d" % (sT0, sT0, ML_OFF))
    a("s_mov_b64 exec, 1")
    a("buffer_store_dwordx2 v[%d:%d], v%d, s[%d:%d], s%d offen" % (vM, vL, vS[3], sWs, sWs + 3, sT0))
    stamp(a, p, 5)
    stamp_store(a, p, 0, 6, 2, 12, 14)
    a.raw("L_k1_end:")
    a("s_endpgm")
    return a, kname, nvgpr


def gen_k2(p):
    a = Asm()
    kname = "reduce_kernel"
    a.raw(".globl %s" % kname)
    a.raw(".p2align 8")
    a.raw(".type %s,@function" % kname)
    a.raw("%s:" % kname)
    a("s_cmp_ge_u32 s2, 80")
    a("s_cbranch_scc1 L_k2_end")
    stamp(a, p, 6)
    a("s_load_dwordx2 s[32:33], s[0:1], 96")
    a("s_load_dwordx2 s[4:5], s[0:1], 80")
    a("s_load_dwordx2 s[8:9], s[0:1], 96")
    a("v_lshlrev_b32 v1, 4, v0")
    a("v_lshrrev_b32 v2, 2, v0")
    a("v_lshlrev_b32 v2, 3, v2")
    a("s_lshl_b32 s12, s2, 13")
    a("s_cmp_ge_u32 s2, 40")
    a("s_cselect_b32 s13, 1024, 0")
    a("s_add_u32 s13, s13, %d" % ML_OFF)
    a("s_mov_b32 s14, 0x%x" % LOG2E)
    a("s_mov_b32 s6, 2560")
    a("s_mov_b32 s7, 0x20000")
    a("s_mov_b32 s10, %d" % WS_USED)
    a("s_mov_b32 s11, 0x20000")
    a("s_add_u32 s15, s12, 4096")
    a("s_waitcnt lgkmcnt(0)")
    ML, Y = 8, 24
    for k in range(8):
        a.vmem("buffer_load_dwordx2 v[%d:%d], v2, s[8:11], s13 offen offset:%d" % (ML + 2 * k, ML + 2 * k + 1, 128 * k),
               "ml%d" % k)
    for k in range(8):
        a.vmem("buffer_load_dwordx4 v[%d:%d], v1, s[8:11], s%d offen offset:%d" %
               (Y + 4 * k, Y + 4 * k + 3, 12 if k < 4 else 15, 1024 * (k & 3)), "y%d" % k)
    T = 56
    a.wait_vm("ml7")
    for k in range(8):
        a("v_max_f32_dpp v%d, v%d, v%d row_half_mirror %s" % (T + k, ML + 2 * k, ML + 2 * k, DPPF))
    for k in range(8):
        a("v_max_f32_dpp v%d, v%d, v%d row_mirror %s" % (T + k, T + k, T + k, DPPF))
    for k in range(8):
        a("v_sub_f32 v%d, v%d, v%d" % (T + k, ML + 2 * k, T + k))
    for k in range(8):
        a("v_mul_f32 v%d, s14, v%d" % (T + k, T + k))
    for k in range(8):
        a("v_exp_f32 v%d, v%d" % (T + k, T + k))
    for k in range(8):
        a("v_mul_f32 v%d, v%d, v%d" % (T + 8 + k, T + k, ML + 2 * k + 1))
    for k in range(8):
        a("v_add_f32_dpp v%d, v%d, v%d row_half_mirror %s" % (T + 8 + k, T + 8 + k, T + 8 + k, DPPF))
    for k in range(8):
        a("v_add_f32_dpp v%d, v%d, v%d row_mirror %s" % (T + 8 + k, T + 8 + k, T + 8 + k, DPPF))
    for k in range(8):
        a("v_rcp_f32 v%d, v%d" % (T + 8 + k, T + 8 + k))
    for k in range(8):
        a("v_mul_f32 v%d, v%d, v%d" % (T + k, T + k, T + 8 + k))
    for k in range(8):
        a.wait_vm("y%d" % k)
        for e in range(4):
            if k == 0:
                a("v_mul_f32 v%d, v%d, v%d" % (4 + e, T, Y + e))
            else:
                a("v_fmac_f32 v%d, v%d, v%d" % (4 + e, T + k, Y + 4 * k + e))
    for e in range(4):
        a("v_add_f32_dpp v%d, v%d, v%d row_ror:4 %s" % (4 + e, 4 + e, 4 + e, DPPF))
    for e in range(4):
        a("v_add_f32_dpp v%d, v%d, v%d row_ror:8 %s" % (4 + e, 4 + e, 4 + e, DPPF))
    for e in range(4):
        a("v_mov_b32 v%d, v%d" % (8 + e, 4 + e))
    for e in range(4):
        a("v_permlane16_swap_b32 v%d, v%d" % (4 + e, 8 + e))
    for e in range(4):
        a("v_add_f32 v%d, v%d, v%d" % (4 + e, 4 + e, 8 + e))
    for e in range(4):
        a("v_mov_b32 v%d, v%d" % (8 + e, 4 + e))
    for e in range(4):
        a("v_permlane32_swap_b32 v%d, v%d" % (4 + e, 8 + e))
    for e in range(4):
        a("v_add_f32 v%d, v%d, v%d" % (4 + e, 4 + e, 8 + e))
    a("v_cvt_pk_bf16_f32 v4, v4, v5")
    a("v_cvt_pk_bf16_f32 v5, v6, v7")
    a("v_lshlrev_b32 v1, 3, v0")
    a("s_lshl_b32 s12, s2, 5")
    a("s_mov_b64 exec, 15")
    a("buffer_store_dwordx2 v[4:5], v1, s[4:7], s12 offen")
    a("s_mov_b64 exec, 1")
    stamp(a, p, 7)
    stamp_store(a, p, 6, 8, 2, 12, 14)
    a.raw("L_k2_end:")
    a("s_endpgm")
    return a, kname, 72


def gen_probe(p):
    a = Asm()
    kname = "probe_kernel"
    a.raw(".globl %s" % kname)
    a.raw(".p2align 8")
    a.raw(".type %s,@function" % kname)
    a.raw("%s:" % kname)
    a("s_cmp_ge_u32 s2, 1")
    a("s_cbranch_scc1 L_k3_end")
    a("s_load_dwordx2 s[8:9], s[0:1], 96")
    a("s_mov_b32 s10, 0x%x" % (STAMP_OFF + (1 << 20)))
    a("s_mov_b32 s11, 0x20000")
    a("s_mov_b32 s12, 0x%x" % STAMP_OFF)
    a("v_lshlrev_b32 v1, 6, v0")
    a("s_waitcnt lgkmcnt(0)")
    kind, col, sel = p.probe.split(":")
    col = int(col)
    sel = int(sel)
    for k in range(4):
        a("s_add_u32 s13, s12, %d" % (k * 4096))
        a("buffer_load_dword v%d, v1, s[8:11], s13 offen" % (4 + k))
        a("buffer_load_dword v%d, v1, s[8:11], s13 offen offset:%d" % (8 + k, 8 * col))
    a("s_waitcnt vmcnt(0)")
    a("v_readfirstlane_b32 s14, v4")
    a("s_sub_u32 s14, s14, 1000")
    for k in range(8):
        a("v_subrev_u32 v%d, s14, v%d" % (4 + k, 4 + k))
        a("v_cvt_f32_u32 v%d, v%d" % (4 + k, 4 + k))
    a("v_min_f32 v4, v4, v5")
    a("v_min_f32 v6, v6, v7")
    a("v_min_f32 v4, v4, v6")
    wave_allreduce(a, "v_min_f32", 4, 20)
    if kind == "max":
        a("v_max_f32 v8, v8, v9")
        a("v_max_f32 v10, v10, v11")
        a("v_max_f32 v8, v8, v10")
        wave_allreduce(a, "v_max_f32", 8, 20)
        a("v_sub_f32 v8, v8, v4")
    elif kind == "max64":
        wave_allreduce(a, "v_max_f32", 8, 20)
        a("v_sub_f32 v8, v8, v4")
    elif kind == "mean":
        a("v_add_f32 v8, v8, v9")
        a("v_add_f32 v10, v10, v11")
        a("v_add_f32 v8, v8, v10")
        a("v_and_b32 v21, 7, v0")
        a("v_cmp_eq_u32 vcc, %d, v21" % sel)
        a("v_cndmask_b32 v8, 0, v8, vcc")
        wave_allreduce(a, "v_add_f32", 8, 20)
        a("v_mul_f32 v8, 0x3d000000, v8")
        a("v_sub_f32 v8, v8, v4")
    else:
        a("v_mov_b32 v8, 0")
    a("v_cvt_u32_f32 v8, v8")
    a("v_readfirstlane_b32 s15, v8")
    a("s_min_u32 s15, s15, 20000")
    a("s_memrealtime s[16:17]")
    a("s_waitcnt lgkmcnt(0)")
    a.raw("L_spin:")
    a("s_memrealtime s[18:19]")
    a("s_waitcnt lgkmcnt(0)")
    a("s_sub_u32 s20, s18, s16")
    a("s_cmp_lt_u32 s20, s15")
    a("s_cbranch_scc1 L_spin")
    a.raw("L_k3_end:")
    a("s_endpgm")
    return a, kname, 32


def desc(kname, nvgpr, nsgpr=102):
    acc = (nvgpr + 3) // 4 * 4
    return """.amdhsa_kernel %s
  .amdhsa_next_free_vgpr %d
  .amdhsa_next_free_sgpr %d
  .amdhsa_accum_offset %d
  .amdhsa_group_segment_fixed_size 0
  .amdhsa_kernarg_size 104
  .amdhsa_user_sgpr_count 2
  .amdhsa_user_sgpr_kernarg_segment_ptr 1
  .amdhsa_system_sgpr_workgroup_id_x 1
.end_amdhsa_kernel
""" % (kname, nvgpr, nsgpr, acc)


def main():
    ap = argparse.ArgumentParser()
    ap.add_argument("--ring", type=int, default=16)
    ap.add_argument("--nt", type=int, default=1)
    ap.add_argument("--interleave", type=int, default=1)
    ap.add_argument("--wo_every", type=int, default=3)
    ap.add_argument("--stamps", type=int, default=0)
    ap.add_argument("--probe", default="")
    ap.add_argument("-o", default="cdna_kernels/%s.s" % NAME)
    p = ap.parse_args()
    k1, n1, v1 = gen_k1(p)
    k2, n2, v2 = gen_k2(p)
    out = HEADER
    out += "; @launch kernel=%s grid=(256,1,1) block=(512,1,1) lds=8448\n" % n1
    out += "; @launch kernel=%s grid=(80,1,1) block=(64,1,1) lds=0\n" % n2
    if p.probe:
        k3, n3, v3 = gen_probe(p)
        out += "; @launch kernel=%s grid=(1,1,1) block=(64,1,1) lds=0\n" % n3
    out += '.amdgcn_target "amdgcn-amd-amdhsa--gfx950"\n.text\n'
    out += k1.text() + k2.text()
    if p.probe:
        out += k3.text()
    out += '.section .rodata,"a"\n.p2align 6\n' + desc(n1, v1) + ".p2align 6\n" + desc(n2, v2)
    if p.probe:
        out += ".p2align 6\n" + desc(n3, v3)
    open(p.o, "w").write(out)
    print("wrote", p.o, "k1 vgprs", v1, "nops", k1.nops, k2.nops)


if __name__ == "__main__":
    main()
```

```python
import sys
import os
import argparse

sys.path.insert(0, os.path.dirname(os.path.abspath(__file__)))
from asmlib import Asm

NAME = "concat_heads__mha_block_cached__gqa_block_cached__decode"
HEADER = open(os.path.join(os.path.dirname(os.path.abspath(__file__)), "header.txt")).read()

LOG2E = 0x3FB8AA3B
SCALE = 0x3DB504F3
DPPF = "row_mask:0xf bank_mask:0xf"

YS_BYTES = 2 * 40 * 128 * 64
ML_OFF = YS_BYTES
WS_USED = ML_OFF + 2 * 128 * 8


def reduce_rows(a, acc):
    for e in range(4):
        a("v_permlane32_swap_b32 v%d, v%d" % (acc[e], acc[e + 4]))
    for e in range(4):
        a("v_add_f32 v%d, v%d, v%d" % (acc[e], acc[e], acc[e + 4]))
    for e in range(2):
        a("v_permlane16_swap_b32 v%d, v%d" % (acc[e], acc[e + 2]))
    for e in range(2):
        a("v_add_f32 v%d, v%d, v%d" % (acc[e], acc[e], acc[e + 2]))


def wave_allreduce(a, op, v, t):
    for pat in ("quad_perm:[1,0,3,2]", "quad_perm:[2,3,0,1]", "row_half_mirror", "row_mirror"):
        a("%s_dpp v%d, v%d, v%d %s %s" % (op, v, v, v, pat, DPPF))
    a("v_mov_b32 v%d, v%d" % (t, v))
    a("v_permlane16_swap_b32 v%d, v%d" % (v, t))
    a("%s v%d, v%d, v%d" % (op, v, v, t))
    a("v_mov_b32 v%d, v%d" % (t, v))
    a("v_permlane32_swap_b32 v%d, v%d" % (v, t))
    a("%s v%d, v%d, v%d" % (op, v, v, t))


def bcast_mac(a, acc, lo, hi, c, w):
    for j in range(4):
        a("v_dot2c_f32_bf16_dpp v%d, v%d, v%d row_newbcast:%d %s" % (acc[2 * j], lo, w + j, c, DPPF))
        a("v_dot2c_f32_bf16_dpp v%d, v%d, v%d row_newbcast:%d %s" % (acc[2 * j + 1], hi, w + j, c, DPPF))


STAMP_OFF = 4 << 20
NSTAMP = 8


def stamp(a, p, idx):
    if p.stamps:
        a("s_memrealtime s[%d:%d]" % (84 + 2 * idx, 85 + 2 * idx))


def stamp_store(a, p, n0, n1, swgs, vz, vt):
    if not p.stamps:
        return
    a("s_waitcnt lgkmcnt(0)")
    a("s_mov_b32 s4, s32")
    a("s_mov_b32 s5, s33")
    a("s_mov_b32 s6, 0x%x" % (STAMP_OFF + (1 << 20)))
    a("s_mov_b32 s7, 0x20000")
    a("s_lshl_b32 s3, s%d, 6" % swgs)
    a("s_add_u32 s3, s3, 0x%x" % STAMP_OFF)
    a("v_mov_b32 v%d, 0" % vz)
    for i in range(n0, n1):
        a("v_mov_b32 v%d, s%d" % (vt, 84 + 2 * i))
        a("v_mov_b32 v%d, s%d" % (vt + 1, 85 + 2 * i))
        a("buffer_store_dwordx2 v[%d:%d], v%d, s[4:7], s3 offen offset:%d" % (vt, vt + 1, vz, 8 * i))
        a("s_nop 4")


def gen_k1(p):
    a = Asm()
    N = p.ring
    NT = " nt" if p.nt else ""
    NW = 8
    NBLK = 2048 // 64 // NW
    kname = "attn_kernel"
    a.raw(".globl %s" % kname)
    a.raw(".p2align 8")
    a.raw(".type %s,@function" % kname)
    a.raw("%s:" % kname)
    sK, sV, sWq, sWo, sX, sWs = 36, 40, 44, 48, 52, 56
    sW, sProb, sHead, sSplit, sT0, sT1, sT2 = 60, 61, 62, 63, 64, 65, 66
    sBlk, sWqOff, sWoOff = 67, 68, 69
    sM2, sM1 = 70, 72
    sLog2e, sScale = 74, 75
    sSidx = 76
    a("s_cmp_ge_u32 s2, 256")
    a("s_cbranch_scc1 L_k1_end")
    stamp(a, p, 0)
    a("s_load_dwordx16 s[8:23], s[0:1], 0")
    a("s_load_dwordx8 s[24:31], s[0:1], 64")
    a("s_load_dwordx2 s[32:33], s[0:1], 96")
    vOff = [1, 2, 3, 4]
    vWq, vWo, vLane = 5, 6, 7
    vQ = 8
    acc = list(range(12, 20))
    vM, vL, vPlo, vPhi = 20, 21, 22, 23
    vT = list(range(24, 32))
    vS = list(range(32, 48))
    ring0 = 48
    W0 = ring0 + 4 * N
    W0 = (W0 + 3) // 4 * 4
    assert W0 + 128 <= 256, W0
    nvgpr = W0 + 128
    a("v_and_b32 v%d, 63, v0" % vLane)
    a("v_lshrrev_b32 v%d, 6, v0" % vT[0])
    a("v_readfirstlane_b32 s%d, v%d" % (sW, vT[0]))
    a("v_lshlrev_b32 v%d, 4, v%d" % (vOff[0], vLane))
    for k in range(1, 4):
        a("v_add_u32 v%d, %d, v%d" % (vOff[k], 4096 * k, vOff[0]))
    a("v_lshrrev_b32 v%d, 4, v%d" % (vT[0], vLane))
    a("v_and_b32 v%d, 15, v%d" % (vT[1], vLane))
    a("v_lshlrev_b32 v%d, 4, v%d" % (vT[2], vT[1]))
    a("v_lshl_add_u32 v%d, v%d, 13, v%d" % (vWq, vT[0], vT[2]))
    a("v_mul_u32_u24 v%d, 1280, v%d" % (vWo, vT[0]))
    a("v_add_u32 v%d, v%d, v%d" % (vWo, vWo, vT[2]))
    a("v_lshl_add_u32 v%d, v%d, 2, v%d" % (vT[3], vT[1], vT[0]))
    a("v_lshlrev_b32 v%d, 1, v%d" % (vT[3], vT[3]))
    a("v_and_b32 v%d, 3, v%d" % (vT[4], vT[1]))
    a("v_lshl_add_u32 v%d, v%d, 2, v%d" % (vT[4], vT[4], vT[0]))
    a("v_lshlrev_b32 v%d, 1, v%d" % (vT[4], vT[4]))
    a("s_and_b32 s%d, s2, 7" % sT0)
    a("s_lshr_b32 s%d, s2, 3" % sT1)
    a("s_and_b32 s%d, s%d, 3" % (sSplit, sT1))
    a("s_lshr_b32 s%d, s%d, 2" % (sT1, sT1))
    a("s_lshl_b32 s%d, s%d, 3" % (sT0, sT0))
    a("s_add_u32 s%d, s%d, s%d" % (sT0, sT0, sT1))
    a("s_lshr_b32 s%d, s%d, 5" % (sProb, sT0))
    a("s_and_b32 s%d, s%d, 31" % (sHead, sT0))
    a("s_lshl_b32 s%d, s%d, 2" % (sSidx, sHead))
    a("s_add_u32 s%d, s%d, s%d" % (sSidx, sSidx, sSplit))
    a("s_mov_b32 s%d, 0x%x" % (sLog2e, LOG2E))
    a("s_mov_b32 s%d, 0x%x" % (sScale, SCALE))
    a("s_mov_b32 s%d, 0xcccccccc" % sM2)
    a("s_mov_b32 s%d, 0xcccccccc" % (sM2 + 1))
    a("s_mov_b32 s%d, 0xaaaaaaaa" % sM1)
    a("s_mov_b32 s%d, 0xaaaaaaaa" % (sM1 + 1))
    a("s_lshl_b32 s%d, s%d, 19" % (sT2, sSidx))
    a("s_waitcnt lgkmcnt(0)")
    a("s_cmp_eq_u32 s%d, 0" % sProb)
    a("s_cselect_b64 s[%d:%d], s[8:9], s[18:19]" % (sX, sX + 1))
    a("s_cselect_b64 s[%d:%d], s[10:11], s[20:21]" % (sK, sK + 1))
    a("s_cselect_b64 s[%d:%d], s[12:13], s[22:23]" % (sV, sV + 1))
    a("s_cselect_b64 s[%d:%d], s[14:15], s[24:25]" % (sWq, sWq + 1))
    a("s_cselect_b64 s[%d:%d], s[16:17], s[26:27]" % (sWo, sWo + 1))
    a("s_mov_b32 s%d, 1280" % (sX + 2))
    a("s_mov_b32 s%d, 0x20000" % (sX + 3))
    a("s_mov_b32 s%d, %d" % (sWq + 2, 640 * 8192))
    a("s_mov_b32 s%d, 0x20000" % (sWq + 3))
    a("s_mul_i32 s%d, s%d, 160" % (sT0, sW))
    vXa, vXb = vT[5], vT[6]
    a.vmem("buffer_load_ushort v%d, v%d, s[%d:%d], s%d offen" % (vXa, vT[3], sX, sX + 3, sT0), "xa")
    a.vmem("buffer_load_ushort v%d, v%d, s[%d:%d], s%d offen offset:128" % (vXb, vT[4], sX, sX + 3, sT0), "xb")
    a("s_mul_i32 s%d, s%d, %d" % (sWqOff, sW, 80 * 8192))
    a("s_lshl_b32 s%d, s%d, 8" % (sT1, sHead))
    a("s_add_u32 s%d, s%d, s%d" % (sWqOff, sWqOff, sT1))
    for t in range(20):
        a.vmem("buffer_load_dwordx4 v[%d:%d], v%d, s[%d:%d], s%d offen" %
               (W0 + 4 * t, W0 + 4 * t + 3, vWq, sWq, sWq + 3, sWqOff), "wq%d" % t)
        if t != 19:
            a("s_add_u32 s%d, s%d, %d" % (sWqOff, sWqOff, 4 * 8192))
    a("s_add_u32 s%d, s%d, s%d" % (sK, sK, sT2))
    a("s_addc_u32 s%d, s%d, 0" % (sK + 1, sK + 1))
    a("s_mov_b32 s%d, 0x80000" % (sK + 2))
    a("s_mov_b32 s%d, 0x20000" % (sK + 3))
    a("s_add_u32 s%d, s%d, s%d" % (sV, sV, sT2))
    a("s_addc_u32 s%d, s%d, 0" % (sV + 1, sV + 1))
    a("s_mov_b32 s%d, 0x80000" % (sV + 2))
    a("s_mov_b32 s%d, 0x20000" % (sV + 3))
    sB0 = 80
    for b in range(NBLK):
        if p.interleave:
            a("s_lshl_b32 s%d, s%d, 14" % (sB0 + b, sW))
            if b:
                a("s_add_u32 s%d, s%d, %d" % (sB0 + b, sB0 + b, b * NW * 16384))
        else:
            a("s_lshl_b32 s%d, s%d, 16" % (sB0 + b, sW))
            if b:
                a("s_add_u32 s%d, s%d, %d" % (sB0 + b, sB0 + b, b * 16384))

    stream = []
    for b in range(NBLK):
        for c in range(16):
            stream.append(("K", b, c))
        for c in range(16):
            stream.append(("V", b, c))

    def issue(j):
        if j >= len(stream):
            return
        kind, b, c = stream[j]
        r = ring0 + 4 * (j % N)
        srd = sK if kind == "K" else sV
        a.vmem("buffer_load_dwordx4 v[%d:%d], v%d, s[%d:%d], s%d offen offset:%d%s" %
               (r, r + 3, vOff[c >> 2], srd, srd + 3, sB0 + b, (c & 3) * 1024, NT), "st%d" % j)

    for j in range(N):
        issue(j)
    a("s_mov_b32 s%d, %d" % (sWo + 2, 4096 * 1280))
    a("s_mov_b32 s%d, 0x20000" % (sWo + 3))
    a("s_mov_b32 s%d, s32" % sWs)
    a("s_mov_b32 s%d, s33" % (sWs + 1))
    a("s_mov_b32 s%d, %d" % (sWs + 2, WS_USED))
    a("s_mov_b32 s%d, 0x20000" % (sWs + 3))
    a("s_mul_i32 s%d, s%d, 163840" % (sWoOff, sHead))
    a("s_lshl_b32 s%d, s%d, 8" % (sT1, sW))
    a("s_add_u32 s%d, s%d, s%d" % (sWoOff, sWoOff, sT1))
    a("s_cmp_ge_u32 s%d, 5" % sW)
    a("s_cselect_b32 s%d, 0x40000000, s%d" % (sWoOff, sWoOff))
    for k in range(8):
        a("v_mov_b32 v%d, 0" % acc[k])
    stamp(a, p, 1)
    vXah, vXbh = vT[7], vT[2]
    a.wait_vm("xb")
    a("v_lshlrev_b32 v%d, 16, v%d" % (vXah, vXa))
    a("v_lshlrev_b32 v%d, 16, v%d" % (vXbh, vXb))
    for t in range(20):
        a.wait_vm("wq%d" % t)
        if t < 16:
            bcast_mac(a, acc, vXa, vXah, t, W0 + 4 * t)
        else:
            bcast_mac(a, acc, vXb, vXbh, t - 16, W0 + 4 * t)
    reduce_rows(a, acc)
    vLdsW = vT[3]
    a("v_lshlrev_b32 v%d, 5, v%d" % (vLdsW, vT[1]))
    a("v_lshl_add_u32 v%d, v%d, 3, v%d" % (vLdsW, vT[0], vLdsW))
    a("s_lshl_b32 s%d, s%d, 9" % (sT0, sW))
    a("v_add_u32 v%d, s%d, v%d" % (vLdsW, sT0, vLdsW))
    a("ds_write_b64 v%d, v[%d:%d]" % (vLdsW, acc[0], acc[1]))
    a("v_lshlrev_b32 v%d, 5, v%d" % (vT[4], vT[1]))
    a("s_waitcnt lgkmcnt(0)")
    a("s_barrier")
    for w in range(8):
        for h in range(2):
            r = W0 + 8 * w + 4 * h
            a("ds_read_b128 v[%d:%d], v%d offset:%d" % (r, r + 3, vT[4], w * 512 + 16 * h))
    a("s_waitcnt lgkmcnt(0)")
    for w in range(1, 8):
        for e in range(8):
            a("v_add_f32 v%d, v%d, v%d" % (W0 + e, W0 + e, W0 + 8 * w + e))
    for j in range(4):
        a("v_cvt_pk_bf16_f32 v%d, v%d, v%d" % (vQ + j, W0 + 2 * j, W0 + 2 * j + 1))
    for k in range(8):
        a("v_mov_b32 v%d, 0" % acc[k])
    a("v_mov_b32 v%d, 0" % vL)

    stamp(a, p, 2)
    wo_next = [0]

    def issue_wo():
        c = wo_next[0]
        if c >= 32:
            return
        r = W0 + 4 * c
        a.vmem("buffer_load_dwordx4 v[%d:%d], v%d, s[%d:%d], s%d offen" %
               (r, r + 3, vWo, sWo, sWo + 3, sWoOff), "wo%d" % c)
        a("s_add_u32 s%d, s%d, 5120" % (sWoOff, sWoOff))
        wo_next[0] += 1

    for j, (kind, b, c) in enumerate(stream):
        r = ring0 + 4 * (j % N)
        a.wait_vm("st%d" % j)
        if kind == "K":
            a("v_dot2_f32_bf16 v%d, v%d, v%d, 0" % (vS[c], r, vQ))
            for k in range(1, 4):
                a("v_dot2_f32_bf16 v%d, v%d, v%d, v%d" % (vS[c], r + k, vQ + k, vS[c]))
        else:
            bcast_mac(a, acc, vPlo, vPhi, c, r)
        issue(j + N)
        if j % p.wo_every == 0:
            issue_wo()
        if kind == "K" and c == 15:
            for cc in range(8):
                a("v_add_f32_dpp v%d, v%d, v%d row_mirror %s" % (vS[cc], vS[cc], vS[cc], DPPF))
            for cc in range(8):
                a("v_add_f32_dpp v%d, v%d, v%d row_mirror row_mask:0xf bank_mask:0xc" %
                  (vS[cc], vS[cc + 8], vS[cc + 8]))
            for cc in range(4):
                a("v_add_f32_dpp v%d, v%d, v%d row_half_mirror %s" % (vS[cc], vS[cc], vS[cc], DPPF))
            for cc in range(4):
                a("v_add_f32_dpp v%d, v%d, v%d row_half_mirror row_mask:0xf bank_mask:0xa" %
                  (vS[cc], vS[cc + 4], vS[cc + 4]))
            for cc in range(4):
                a("v_add_f32_dpp v%d, v%d, v%d quad_perm:[2,3,0,1] %s" % (vS[cc], vS[cc], vS[cc], DPPF))
            for cc in range(2):
                a("v_cndmask_b32 v%d, v%d, v%d, s[%d:%d]" % (vS[cc], vS[cc], vS[cc + 2], sM2, sM2 + 1))
            for cc in range(2):
                a("v_add_f32_dpp v%d, v%d, v%d quad_perm:[1,0,3,2] %s" % (vS[cc], vS[cc], vS[cc], DPPF))
            s = vS[0]
            a("v_cndmask_b32 v%d, v%d, v%d, s[%d:%d]" % (s, vS[0], vS[1], sM1, sM1 + 1))
            a("v_cvt_pk_bf16_f32 v%d, 0, v%d" % (s, s))
            a("v_mul_f32 v%d, s%d, v%d" % (s, sScale, s))
            a("v_cvt_pk_bf16_f32 v%d, 0, v%d" % (s, s))
            bm, tmp, al = vS[1], vS[2], vS[3]
            a("v_mov_b32 v%d, v%d" % (bm, s))
            wave_allreduce(a, "v_max_f32", bm, tmp)
            if b == 0:
                a("v_mov_b32 v%d, v%d" % (vM, bm))
            else:
                a("v_max_f32 v%d, v%d, v%d" % (bm, bm, vM))
                a("v_sub_f32 v%d, v%d, v%d" % (al, vM, bm))
                a("v_mul_f32 v%d, s%d, v%d" % (al, sLog2e, al))
                a("v_exp_f32 v%d, v%d" % (al, al))
                a("v_mov_b32 v%d, v%d" % (vM, bm))
            a("v_sub_f32 v%d, v%d, v%d" % (s, s, vM))
            a("v_mul_f32 v%d, s%d, v%d" % (s, sLog2e, s))
            a("v_exp_f32 v%d, v%d" % (s, s))
            if b != 0:
                for k in range(8):
                    a("v_mul_f32 v%d, v%d, v%d" % (acc[k], al, acc[k]))
                a("v_mul_f32 v%d, v%d, v%d" % (vL, al, vL))
            a("v_add_f32 v%d, v%d, v%d" % (vL, vL, s))
            a("v_cvt_pk_bf16_f32 v%d, v%d, 0" % (vPlo, s))
            a("v_cvt_pk_bf16_f32 v%d, 0, v%d" % (vPhi, s))
    while wo_next[0] < 32:
        issue_wo()
    stamp(a, p, 3)
    reduce_rows(a, acc)
    a("ds_write_b64 v%d, v[%d:%d] offset:4096" % (vLdsW, acc[0], acc[1]))
    wave_allreduce(a, "v_add_f32", vL, vS[0])
    a("s_lshl_b32 s%d, s%d, 3" % (sT0, sW))
    a("v_mov_b32 v%d, s%d" % (vS[1], sT0))
    a("s_mov_b64 exec, 1")
    a("ds_write_b64 v%d, v[%d:%d] offset:8192" % (vS[1], vM, vL))
    a("s_mov_b64 exec, -1")
    a("v_lshlrev_b32 v%d, 4, v%d" % (vS[2], vT[1]))
    a("v_lshl_add_u32 v%d, v%d, 2, v%d" % (vS[2], vT[0], vS[2]))
    a("v_mov_b32 v%d, 0" % vS[3])
    a("s_waitcnt lgkmcnt(0)")
    a("s_barrier")
    a("s_cmp_ge_u32 s%d, 5" % sW)
    a("s_cbranch_scc1 L_k1_end")
    stamp(a, p, 4)
    ml = ring0
    ov = ring0 + 16
    for k in range(4):
        a("ds_read_b128 v[%d:%d], v%d offset:%d" % (ml + 4 * k, ml + 4 * k + 3, vS[3], 8192 + 16 * k))
    for w in range(8):
        a("ds_read2st64_b32 v[%d:%d], v%d offset0:%d offset1:%d" %
          (ov + 2 * w, ov + 2 * w + 1, vS[2], 16 + 2 * w, 16 + 2 * w + 1))
    a("s_waitcnt lgkmcnt(8)")
    a("v_max3_f32 v%d, v%d, v%d, v%d" % (vM, ml, ml + 2, ml + 4))
    a("v_max3_f32 v%d, v%d, v%d, v%d" % (vM, vM, ml + 6, ml + 8))
    a("v_max3_f32 v%d, v%d, v%d, v%d" % (vM, vM, ml + 10, ml + 12))
    a("v_max_f32 v%d, v%d, v%d" % (vM, vM, ml + 14))
    for w in range(8):
        a("v_sub_f32 v%d, v%d, v%d" % (ml + 2 * w, ml + 2 * w, vM))
    for w in range(8):
        a("v_mul_f32 v%d, s%d, v%d" % (ml + 2 * w, sLog2e, ml + 2 * w))
    for w in range(8):
        a("v_exp_f32 v%d, v%d" % (ml + 2 * w, ml + 2 * w))
    a("s_waitcnt lgkmcnt(0)")
    oA, oB = vS[4], vS[5]
    a("v_mul_f32 v%d, v%d, v%d" % (oA, ml, ov))
    a("v_mul_f32 v%d, v%d, v%d" % (oB, ml, ov + 1))
    a("v_mul_f32 v%d, v%d, v%d" % (vL, ml, ml + 1))
    for w in range(1, 8):
        a("v_fmac_f32 v%d, v%d, v%d" % (oA, ml + 2 * w, ov + 2 * w))
        a("v_fmac_f32 v%d, v%d, v%d" % (oB, ml + 2 * w, ov + 2 * w + 1))
        a("v_fmac_f32 v%d, v%d, v%d" % (vL, ml + 2 * w, ml + 2 * w + 1))
    loA, hiA, loB, hiB = vS[6], vS[7], vS[8], vS[9]
    a("v_cvt_pk_bf16_f32 v%d, v%d, 0" % (loA, oA))
    a("v_cvt_pk_bf16_f32 v%d, 0, v%d" % (hiA, oA))
    a("v_cvt_pk_bf16_f32 v%d, v%d, 0" % (loB, oB))
    a("v_cvt_pk_bf16_f32 v%d, 0, v%d" % (hiB, oB))
    for k in range(8):
        a("v_mov_b32 v%d, 0" % acc[k])
    a.wait_vm("wo31")
    for c in range(32):
        if c < 16:
            bcast_mac(a, acc, loA, hiA, c, W0 + 4 * c)
        else:
            bcast_mac(a, acc, loB, hiB, c - 16, W0 + 4 * c)
    reduce_rows(a, acc)
    a("v_lshrrev_b32 v%d, 1, v%d" % (vS[10], vT[1]))
    a("v_lshlrev_b32 v%d, 13, v%d" % (vS[10], vS[10]))
    a("v_and_b32 v%d, 1, v%d" % (vS[11], vT[1]))
    a("v_lshl_add_u32 v%d, v%d, 5, v%d" % (vS[10], vS[11], vS[10]))
    a("v_lshl_add_u32 v%d, v%d, 3, v%d" % (vS[10], vT[0], vS[10]))
    a("s_mul_i32 s%d, s%d, 40" % (sT0, sProb))
    a("s_lshl_b32 s%d, s%d, 3" % (sT1, sW))
    a("s_add_u32 s%d, s%d, s%d" % (sT0, sT0, sT1))
    a("s_lshl_b32 s%d, s%d, 7" % (sT0, sT0))
    a("s_add_u32 s%d, s%d, s%d" % (sT0, sT0, sSidx))
    a("s_lshl_b32 s%d, s%d, 6" % (sT0, sT0))
    a("buffer_store_dwordx2 v[%d:%d], v%d, s[%d:%d], s%d offen" % (acc[0], acc[1], vS[10], sWs, sWs + 3, sT0))
    a("s_cmp_lg_u32 s%d, 0" % sW)
    a("s_cbranch_scc1 L_k1_end")
    a("s_lshl_b32 s%d, s%d, 7" % (sT0, sProb))
    a("s_add_u32 s%d, s%d, s%d" % (sT0, sT0, sSidx))
    a("s_lshl_b32 s%d, s%d, 3" % (sT0, sT0))
    a("s_add_u32 s%d, s%d, %d" % (sT0, sT0, ML_OFF))
    a("s_mov_b64 exec, 1")
    a("buffer_store_dwordx2 v[%d:%d], v%d, s[%d:%d], s%d offen" % (vM, vL, vS[3], sWs, sWs + 3, sT0))
    stamp(a, p, 5)
    stamp_store(a, p, 0, 6, 2, 12, 14)
    a.raw("L_k1_end:")
    a("s_endpgm")
    return a, kname, nvgpr


def gen_k2(p):
    a = Asm()
    kname = "reduce_kernel"
    a.raw(".globl %s" % kname)
    a.raw(".p2align 8")
    a.raw(".type %s,@function" % kname)
    a.raw("%s:" % kname)
    a("s_cmp_ge_u32 s2, 80")
    a("s_cbranch_scc1 L_k2_end")
    stamp(a, p, 6)
    a("s_load_dwordx2 s[32:33], s[0:1], 96")
    a("s_load_dwordx2 s[4:5], s[0:1], 80")
    a("s_load_dwordx2 s[8:9], s[0:1], 96")
    a("v_lshlrev_b32 v1, 4, v0")
    a("v_lshrrev_b32 v2, 2, v0")
    a("v_lshlrev_b32 v2, 3, v2")
    a("s_lshl_b32 s12, s2, 13")
    a("s_cmp_ge_u32 s2, 40")
    a("s_cselect_b32 s13, 1024, 0")
    a("s_add_u32 s13, s13, %d" % ML_OFF)
    a("s_mov_b32 s14, 0x%x" % LOG2E)
    a("s_mov_b32 s6, 2560")
    a("s_mov_b32 s7, 0x20000")
    a("s_mov_b32 s10, %d" % WS_USED)
    a("s_mov_b32 s11, 0x20000")
    a("s_add_u32 s15, s12, 4096")
    a("s_waitcnt lgkmcnt(0)")
    ML, Y = 8, 24
    for k in range(8):
        a.vmem("buffer_load_dwordx2 v[%d:%d], v2, s[8:11], s13 offen offset:%d" % (ML + 2 * k, ML + 2 * k + 1, 128 * k),
               "ml%d" % k)
    for k in range(8):
        a.vmem("buffer_load_dwordx4 v[%d:%d], v1, s[8:11], s%d offen offset:%d" %
               (Y + 4 * k, Y + 4 * k + 3, 12 if k < 4 else 15, 1024 * (k & 3)), "y%d" % k)
    T = 56
    a.wait_vm("ml7")
    for k in range(8):
        a("v_max_f32_dpp v%d, v%d, v%d row_half_mirror %s" % (T + k, ML + 2 * k, ML + 2 * k, DPPF))
    for k in range(8):
        a("v_max_f32_dpp v%d, v%d, v%d row_mirror %s" % (T + k, T + k, T + k, DPPF))
    for k in range(8):
        a("v_sub_f32 v%d, v%d, v%d" % (T + k, ML + 2 * k, T + k))
    for k in range(8):
        a("v_mul_f32 v%d, s14, v%d" % (T + k, T + k))
    for k in range(8):
        a("v_exp_f32 v%d, v%d" % (T + k, T + k))
    for k in range(8):
        a("v_mul_f32 v%d, v%d, v%d" % (T + 8 + k, T + k, ML + 2 * k + 1))
    for k in range(8):
        a("v_add_f32_dpp v%d, v%d, v%d row_half_mirror %s" % (T + 8 + k, T + 8 + k, T + 8 + k, DPPF))
    for k in range(8):
        a("v_add_f32_dpp v%d, v%d, v%d row_mirror %s" % (T + 8 + k, T + 8 + k, T + 8 + k, DPPF))
    for k in range(8):
        a("v_rcp_f32 v%d, v%d" % (T + 8 + k, T + 8 + k))
    for k in range(8):
        a("v_mul_f32 v%d, v%d, v%d" % (T + k, T + k, T + 8 + k))
    for k in range(8):
        a.wait_vm("y%d" % k)
        for e in range(4):
            if k == 0:
                a("v_mul_f32 v%d, v%d, v%d" % (4 + e, T, Y + e))
            else:
                a("v_fmac_f32 v%d, v%d, v%d" % (4 + e, T + k, Y + 4 * k + e))
    for e in range(4):
        a("v_add_f32_dpp v%d, v%d, v%d row_ror:4 %s" % (4 + e, 4 + e, 4 + e, DPPF))
    for e in range(4):
        a("v_add_f32_dpp v%d, v%d, v%d row_ror:8 %s" % (4 + e, 4 + e, 4 + e, DPPF))
    for e in range(4):
        a("v_mov_b32 v%d, v%d" % (8 + e, 4 + e))
    for e in range(4):
        a("v_permlane16_swap_b32 v%d, v%d" % (4 + e, 8 + e))
    for e in range(4):
        a("v_add_f32 v%d, v%d, v%d" % (4 + e, 4 + e, 8 + e))
    for e in range(4):
        a("v_mov_b32 v%d, v%d" % (8 + e, 4 + e))
    for e in range(4):
        a("v_permlane32_swap_b32 v%d, v%d" % (4 + e, 8 + e))
    for e in range(4):
        a("v_add_f32 v%d, v%d, v%d" % (4 + e, 4 + e, 8 + e))
    a("v_cvt_pk_bf16_f32 v4, v4, v5")
    a("v_cvt_pk_bf16_f32 v5, v6, v7")
    a("v_lshlrev_b32 v1, 3, v0")
    a("s_lshl_b32 s12, s2, 5")
    a("s_mov_b64 exec, 15")
    a("buffer_store_dwordx2 v[4:5], v1, s[4:7], s12 offen")
    a("s_mov_b64 exec, 1")
    stamp(a, p, 7)
    stamp_store(a, p, 6, 8, 2, 12, 14)
    a.raw("L_k2_end:")
    a("s_endpgm")
    return a, kname, 72


def gen_probe(p):
    a = Asm()
    kname = "probe_kernel"
    a.raw(".globl %s" % kname)
    a.raw(".p2align 8")
    a.raw(".type %s,@function" % kname)
    a.raw("%s:" % kname)
    a("s_cmp_ge_u32 s2, 1")
    a("s_cbranch_scc1 L_k3_end")
    a("s_load_dwordx2 s[8:9], s[0:1], 96")
    a("s_mov_b32 s10, 0x%x" % (STAMP_OFF + (1 << 20)))
    a("s_mov_b32 s11, 0x20000")
    a("s_mov_b32 s12, 0x%x" % STAMP_OFF)
    a("v_lshlrev_b32 v1, 6, v0")
    a("s_waitcnt lgkmcnt(0)")
    kind, col, sel = p.probe.split(":")
    col = int(col)
    sel = int(sel)
    colb = sel if kind.startswith("d") else 0
    for k in range(4):
        a("s_add_u32 s13, s12, %d" % (k * 4096))
        a("buffer_load_dword v%d, v1, s[8:11], s13 offen offset:%d" % (4 + k, 8 * colb))
        a("buffer_load_dword v%d, v1, s[8:11], s13 offen offset:%d" % (8 + k, 8 * col))
    a("s_waitcnt vmcnt(0)")
    if kind.startswith("d"):
        for k in range(4):
            a("v_sub_u32 v%d, v%d, v%d" % (8 + k, 8 + k, 4 + k))
            a("v_cvt_f32_u32 v%d, v%d" % (8 + k, 8 + k))
        if kind == "dmean":
            a("v_add_f32 v8, v8, v9")
            a("v_add_f32 v10, v10, v11")
            a("v_add_f32 v8, v8, v10")
            wave_allreduce(a, "v_add_f32", 8, 20)
            a("v_mul_f32 v8, 0x3d200000, v8")
        elif kind == "dmean64":
            wave_allreduce(a, "v_add_f32", 8, 20)
            a("v_mul_f32 v8, 0x3e200000, v8")
        elif kind == "dmax":
            a("v_max_f32 v8, v8, v9")
            a("v_max_f32 v10, v10, v11")
            a("v_max_f32 v8, v8, v10")
            wave_allreduce(a, "v_max_f32", 8, 20)
            a("v_mul_f32 v8, 0x41200000, v8")
    else:
        a("v_readfirstlane_b32 s14, v4")
        a("s_sub_u32 s14, s14, 1000")
        for k in range(8):
            a("v_subrev_u32 v%d, s14, v%d" % (4 + k, 4 + k))
            a("v_cvt_f32_u32 v%d, v%d" % (4 + k, 4 + k))
        a("v_min_f32 v4, v4, v5")
        a("v_min_f32 v6, v6, v7")
        a("v_min_f32 v4, v4, v6")
        wave_allreduce(a, "v_min_f32", 4, 20)
    if kind == "max":
        a("v_max_f32 v8, v8, v9")
        a("v_max_f32 v10, v10, v11")
        a("v_max_f32 v8, v8, v10")
        wave_allreduce(a, "v_max_f32", 8, 20)
        a("v_sub_f32 v8, v8, v4")
    elif kind == "max64":
        wave_allreduce(a, "v_max_f32", 8, 20)
        a("v_sub_f32 v8, v8, v4")
    elif kind == "mean":
        a("v_add_f32 v8, v8, v9")
        a("v_add_f32 v10, v10, v11")
        a("v_add_f32 v8, v8, v10")
        a("v_and_b32 v21, 7, v0")
        a("v_cmp_eq_u32 vcc, %d, v21" % sel)
        a("v_cndmask_b32 v8, 0, v8, vcc")
        wave_allreduce(a, "v_add_f32", 8, 20)
        a("v_mul_f32 v8, 0x3d000000, v8")
        a("v_sub_f32 v8, v8, v4")
    elif kind == "zero":
        a("v_mov_b32 v8, 0")
    a("v_cvt_u32_f32 v8, v8")
    a("v_readfirstlane_b32 s15, v8")
    a("s_min_u32 s15, s15, 20000")
    a("s_memrealtime s[16:17]")
    a("s_waitcnt lgkmcnt(0)")
    a.raw("L_spin:")
    a("s_memrealtime s[18:19]")
    a("s_waitcnt lgkmcnt(0)")
    a("s_sub_u32 s20, s18, s16")
    a("s_cmp_lt_u32 s20, s15")
    a("s_cbranch_scc1 L_spin")
    a.raw("L_k3_end:")
    a("s_endpgm")
    return a, kname, 32


def desc(kname, nvgpr, nsgpr=102):
    acc = (nvgpr + 3) // 4 * 4
    return """.amdhsa_kernel %s
  .amdhsa_next_free_vgpr %d
  .amdhsa_next_free_sgpr %d
  .amdhsa_accum_offset %d
  .amdhsa_group_segment_fixed_size 0
  .amdhsa_kernarg_size 104
  .amdhsa_user_sgpr_count 2
  .amdhsa_user_sgpr_kernarg_segment_ptr 1
  .amdhsa_system_sgpr_workgroup_id_x 1
.end_amdhsa_kernel
""" % (kname, nvgpr, nsgpr, acc)


def main():
    ap = argparse.ArgumentParser()
    ap.add_argument("--ring", type=int, default=16)
    ap.add_argument("--nt", type=int, default=1)
    ap.add_argument("--interleave", type=int, default=1)
    ap.add_argument("--wo_every", type=int, default=3)
    ap.add_argument("--stamps", type=int, default=0)
    ap.add_argument("--probe", default="")
    ap.add_argument("-o", default="cdna_kernels/%s.s" % NAME)
    p = ap.parse_args()
    k1, n1, v1 = gen_k1(p)
    k2, n2, v2 = gen_k2(p)
    out = HEADER
    out += "; @launch kernel=%s grid=(256,1,1) block=(512,1,1) lds=8448\n" % n1
    out += "; @launch kernel=%s grid=(80,1,1) block=(64,1,1) lds=0\n" % n2
    if p.probe:
        k3, n3, v3 = gen_probe(p)
        out += "; @launch kernel=%s grid=(1,1,1) block=(64,1,1) lds=0\n" % n3
    out += '.amdgcn_target "amdgcn-amd-amdhsa--gfx950"\n.text\n'
    out += k1.text() + k2.text()
    if p.probe:
        out += k3.text()
    out += '.section .rodata,"a"\n.p2align 6\n' + desc(n1, v1) + ".p2align 6\n" + desc(n2, v2)
    if p.probe:
        out += ".p2align 6\n" + desc(n3, v3)
    open(p.o, "w").write(out)
    print("wrote", p.o, "k1 vgprs", v1, "nops", k1.nops, k2.nops)


if __name__ == "__main__":
    main()
```

```python
import sys
import os
import argparse

sys.path.insert(0, os.path.dirname(os.path.abspath(__file__)))
from asmlib import Asm
from gen1 import reduce_rows, wave_allreduce, bcast_mac, desc, gen_probe, HEADER, NAME, LOG2E, SCALE, DPPF
from gen1 import STAMP_OFF

YS_BYTES = 2 * 40 * 128 * 64
ML_OFF = YS_BYTES
WS_USED = ML_OFF + 2 * 128 * 8
NCONS = 80


def stamp(a, p, idx):
    if p.stamps:
        a("s_memrealtime s[%d:%d]" % (84 + 2 * idx, 85 + 2 * idx))


def stamp_store(a, p, idxs, swgs, vz, vt):
    if not p.stamps:
        return
    a("s_waitcnt lgkmcnt(0)")
    a("s_mov_b32 s4, s32")
    a("s_mov_b32 s5, s33")
    a("s_mov_b32 s6, 0x%x" % (STAMP_OFF + (1 << 20)))
    a("s_mov_b32 s7, 0x20000")
    a("s_lshl_b32 s3, s%d, 6" % swgs)
    a("s_add_u32 s3, s3, 0x%x" % STAMP_OFF)
    a("v_mov_b32 v%d, 0" % vz)
    for i in idxs:
        a("v_mov_b32 v%d, s%d" % (vt, 84 + 2 * i))
        a("v_mov_b32 v%d, s%d" % (vt + 1, 85 + 2 * i))
        a("buffer_store_dwordx2 v[%d:%d], v%d, s[4:7], s3 offen offset:%d" % (vt, vt + 1, vz, 8 * i))
        a("s_nop 4")


def consumer(a, p, poll, sCi, sWs, sOut, sDbg, vLane, vb, lab):
    Y = vb
    ML = vb + 32
    T = vb + 36
    vA = vb + 48
    vZ = vb + 49
    acc = [vb + 52 + e for e in range(4)]
    sYb, sYb2, sMl = 3, 100, 101
    SC = " sc1" if poll else ""
    a("v_lshlrev_b32 v%d, 4, v%d" % (vA, vLane))
    a("s_lshl_b32 s%d, s%d, 13" % (sYb, sCi))
    a("s_add_u32 s%d, s%d, 4096" % (sYb2, sYb))
    a("s_cmp_ge_u32 s%d, 40" % sCi)
    a("s_cselect_b32 s%d, 1024, 0" % sMl)
    a("s_add_u32 s%d, s%d, %d" % (sMl, sMl, ML_OFF))

    def ld_ml():
        a("buffer_load_dwordx4 v[%d:%d], v%d, s[%d:%d], s%d offen%s" % (ML, ML + 3, vA, sWs, sWs + 3, sMl, SC))

    def ld_y(k):
        a("buffer_load_dwordx4 v[%d:%d], v%d, s[%d:%d], s%d offen offset:%d%s" %
          (Y + 4 * k, Y + 4 * k + 3, vA, sWs, sWs + 3, sYb if k < 4 else sYb2, 1024 * (k & 3), SC))

    if poll:
        sCnt = 26
        a("v_mov_b32 v%d, 0" % vZ)
        a("s_mov_b32 s%d, 0x40000" % sCnt)
        a.label(lab + "_cnt")
        a("buffer_load_dword v%d, v%d, s[%d:%d], 0 offen sc1" % (T, vZ, sDbg, sDbg + 3))
        a("s_sub_u32 s%d, s%d, 1" % (sCnt, sCnt))
        a("s_cbranch_scc1 %s_go" % lab)
        a("s_waitcnt vmcnt(0)")
        a("v_cmp_gt_u32 vcc, 256, v%d" % T)
        a("s_cbranch_vccnz %s_cnt" % lab)
        a.label(lab + "_go")
        a("s_mov_b32 s%d, 0x40000" % sCnt)
        for k in range(9):
            a("s_mov_b64 s[%d:%d], -1" % (8 + 2 * k, 9 + 2 * k))
        a.label(lab + "_poll")
        for k in [8] + list(range(8)):
            a("s_mov_b64 exec, s[%d:%d]" % (8 + 2 * k, 9 + 2 * k))
            a("s_cbranch_execz %s_s%d" % (lab, k))
            if k == 8:
                ld_ml()
            else:
                ld_y(k)
            a.label("%s_s%d" % (lab, k), pad=False)
        a("s_mov_b64 exec, -1")
        a("s_sub_u32 s%d, s%d, 1" % (sCnt, sCnt))
        a("s_waitcnt vmcnt(0)")
        a("s_cbranch_scc1 %s_done" % lab)
        for k in range(9):
            r = ML if k == 8 else Y + 4 * k
            a("v_max3_u32 v%d, v%d, v%d, v%d" % (T + k, r, r + 1, r + 2))
        for k in range(9):
            r = ML if k == 8 else Y + 4 * k
            a("v_max_u32 v%d, v%d, v%d" % (T + k, T + k, r + 3))
        for k in range(9):
            a("v_cmp_eq_u32 s[%d:%d], -1, v%d" % (8 + 2 * k, 9 + 2 * k, T + k))
        a("v_max3_u32 v%d, v%d, v%d, v%d" % (T, T, T + 1, T + 2))
        a("v_max3_u32 v%d, v%d, v%d, v%d" % (T + 3, T + 3, T + 4, T + 5))
        a("v_max3_u32 v%d, v%d, v%d, v%d" % (T + 6, T + 6, T + 7, T + 8))
        a("v_max3_u32 v%d, v%d, v%d, v%d" % (T, T, T + 3, T + 6))
        a("v_cmp_eq_u32 vcc, -1, v%d" % T)
        a("s_cbranch_vccnz %s_poll" % lab)
        a.label(lab + "_done")
        stamp(a, p, 6)
    else:
        ld_ml()
        for k in range(8):
            ld_y(k)
        a("s_waitcnt vmcnt(8)")
    m0, l0, m1, l1 = ML, ML + 1, ML + 2, ML + 3
    M, f0, f1, L = T, T + 1, T + 2, T + 3
    a("s_mov_b32 s%d, 0x%x" % (sMl, LOG2E))
    a("v_max_f32 v%d, v%d, v%d" % (M, m0, m1))
    a("v_max_f32_dpp v%d, v%d, v%d quad_perm:[1,0,3,2] %s" % (M, M, M, DPPF))
    a("v_sub_f32 v%d, v%d, v%d" % (f0, m0, M))
    a("v_sub_f32 v%d, v%d, v%d" % (f1, m1, M))
    a("v_mul_f32 v%d, s%d, v%d" % (f0, sMl, f0))
    a("v_mul_f32 v%d, s%d, v%d" % (f1, sMl, f1))
    a("v_exp_f32 v%d, v%d" % (f0, f0))
    a("v_exp_f32 v%d, v%d" % (f1, f1))
    a("v_mul_f32 v%d, v%d, v%d" % (L, f0, l0))
    a("v_fmac_f32 v%d, v%d, v%d" % (L, f1, l1))
    a("v_add_f32_dpp v%d, v%d, v%d quad_perm:[1,0,3,2] %s" % (L, L, L, DPPF))
    a("v_rcp_f32 v%d, v%d" % (L, L))
    a("v_mul_f32 v%d, v%d, v%d" % (f0, f0, L))
    a("v_mul_f32 v%d, v%d, v%d" % (f1, f1, L))
    for k in range(8):
        if not poll:
            a("s_waitcnt vmcnt(%d)" % (7 - k))
        c = k >> 1
        f = f1 if (k & 1) else f0
        for e in range(4):
            a("%s v%d, v%d, v%d quad_perm:[%d,%d,%d,%d] %s" %
              ("v_mul_f32_dpp" if k == 0 else "v_fmac_f32_dpp", acc[e], f, Y + 4 * k + e, c, c, c, c, DPPF))
    a("v_permlane32_swap_b32 v%d, v%d" % (acc[0], acc[2]))
    a("v_permlane32_swap_b32 v%d, v%d" % (acc[1], acc[3]))
    a("v_add_f32 v%d, v%d, v%d" % (acc[0], acc[0], acc[2]))
    a("v_add_f32 v%d, v%d, v%d" % (acc[1], acc[1], acc[3]))
    a("v_and_b32 v%d, 3, v%d" % (T + 4, vLane))
    a("v_lshrrev_b32 v%d, 4, v%d" % (T + 5, vLane))
    a("v_permlane16_swap_b32 v%d, v%d" % (acc[0], acc[1]))
    a("v_add_f32 v%d, v%d, v%d" % (acc[0], acc[0], acc[1]))
    a("v_lshl_add_u32 v%d, v%d, 2, v%d" % (T + 4, T + 4, T + 5))
    a("v_lshlrev_b32 v%d, 1, v%d" % (T + 4, T + 4))
    a("v_add_f32_dpp v%d, v%d, v%d row_ror:4 %s" % (acc[0], acc[0], acc[0], DPPF))
    a("s_lshl_b32 s%d, s%d, 5" % (sYb, sCi))
    a("v_add_f32_dpp v%d, v%d, v%d row_ror:8 %s" % (acc[0], acc[0], acc[0], DPPF))
    a("v_cvt_pk_bf16_f32 v%d, v%d, v%d" % (acc[0], acc[0], acc[0]))
    a("s_mov_b32 exec_lo, 0x000f000f")
    a("s_mov_b32 exec_hi, 0x000f000f")
    a("buffer_store_short v%d, v%d, s[%d:%d], s%d offen" % (acc[0], T + 4, sOut, sOut + 3, sYb))


def gen_k1(p):
    a = Asm()
    R = p.ring
    NT = " nt" if p.nt else ""
    WQM = " nt" if p.wq_nt else ""
    WOM = " nt" if p.wo_nt else ""
    NW = 8
    NBLK = 4
    G, g = p.group, p.gran
    nst = 64 // g
    fused = p.fused
    SC = " sc1" if fused else ""
    kname = NAME + "_kernel" if fused and not p.probe else "attn_kernel"
    a.raw(".globl %s" % kname)
    a.raw(".p2align 8")
    a.raw(".type %s,@function" % kname)
    a.raw("%s:" % kname)
    sW, sProb = 34, 35
    sK, sV, sWq, sWo, sX, sWs = 36, 40, 44, 48, 52, 56
    sHead, sSidx, sWOff, sT0 = 60, 61, 62, 63
    sSt = 64
    sLog2e, sScale, sYO, sRot = 80, 81, 82, 83
    sM2, sM1 = 4, 6
    sT1, sT2, sT3 = 3, 100, 101
    sOut, sDbg = sWq, sX
    a("s_cmp_ge_u32 s2, 256")
    a("s_cbranch_scc1 L_end")
    stamp(a, p, 0)
    a("s_load_dwordx16 s[8:23], s[0:1], 0")
    a("s_load_dwordx8 s[24:31], s[0:1], 64")
    a("s_load_dwordx2 s[32:33], s[0:1], 96")
    vOff = [1, 2, 3, 4]
    vWq, vWo, vLane = 5, 6, 7
    vQ = 8
    acc = list(range(12, 20))
    vM, vL, vPlo, vPhi = 20, 21, 22, 23
    vT = list(range(24, 32))
    vS = list(range(32, 48))
    ring0 = 48
    W0 = ring0 + 4 * R
    vSpare = W0 + 128
    nvgpr = vSpare + 1
    assert nvgpr <= 256, nvgpr
    a("v_and_b32 v%d, 63, v0" % vLane)
    a("v_lshrrev_b32 v%d, 6, v0" % vT[0])
    a("v_readfirstlane_b32 s%d, v%d" % (sW, vT[0]))
    a("v_lshrrev_b32 v%d, 4, v%d" % (vT[0], vLane))
    a("v_and_b32 v%d, 15, v%d" % (vT[1], vLane))
    a("v_lshlrev_b32 v%d, 4, v%d" % (vT[2], vT[1]))
    a("v_lshl_add_u32 v%d, v%d, 13, v%d" % (vWq, vT[0], vT[2]))
    a("v_lshl_add_u32 v%d, v%d, 2, v%d" % (vT[3], vT[1], vT[0]))
    a("v_lshlrev_b32 v%d, 1, v%d" % (vT[3], vT[3]))
    a("v_and_b32 v%d, 31, v%d" % (vT[4], vT[3]))
    a("s_and_b32 s%d, s2, 7" % sT0)
    a("s_lshr_b32 s%d, s2, 3" % sT1)
    a("s_lshl_b32 s%d, s%d, 5" % (sT0, sT0))
    a("s_add_u32 s%d, s%d, s%d" % (sT0, sT0, sT1))
    a("s_lshr_b32 s%d, s%d, 7" % (sProb, sT0))
    a("s_and_b32 s%d, s%d, 127" % (sSidx, sT0))
    a("s_lshr_b32 s%d, s%d, 2" % (sHead, sSidx))
    a("s_mul_i32 s%d, s%d, 160" % (sT0, sW))
    a("s_mul_i32 s%d, s%d, %d" % (sWOff, sW, 80 * 8192))
    a("s_lshl_b32 s%d, s%d, 8" % (sT1, sHead))
    a("s_add_u32 s%d, s%d, s%d" % (sWOff, sWOff, sT1))
    a("s_mov_b32 s%d, 1280" % (sX + 2))
    a("s_mov_b32 s%d, 0x20000" % (sX + 3))
    a("s_mov_b32 s%d, %d" % (sWq + 2, 640 * 8192))
    a("s_mov_b32 s%d, 0x20000" % (sWq + 3))
    a("s_cmp_eq_u32 s%d, 0" % sProb)
    a("s_waitcnt lgkmcnt(0)")
    a("s_cselect_b64 s[%d:%d], s[8:9], s[18:19]" % (sX, sX + 1))
    a("s_cselect_b64 s[%d:%d], s[14:15], s[24:25]" % (sWq, sWq + 1))
    a("s_cselect_b64 s[%d:%d], s[10:11], s[20:21]" % (sK, sK + 1))
    a("s_cselect_b64 s[%d:%d], s[12:13], s[22:23]" % (sV, sV + 1))
    a("s_cselect_b64 s[%d:%d], s[16:17], s[26:27]" % (sWo, sWo + 1))
    vXa, vXb = vT[5], vT[6]
    for t in range(20):
        a.vmem("buffer_load_dwordx4 v[%d:%d], v%d, s[%d:%d], s%d offen%s" %
               (W0 + 4 * t, W0 + 4 * t + 3, vWq, sWq, sWq + 3, sWOff, WQM), "wq%d" % t)
        if t != 19:
            a("s_add_u32 s%d, s%d, %d" % (sWOff, sWOff, 4 * 8192))
        if t == 0:
            a.vmem("buffer_load_ushort v%d, v%d, s[%d:%d], s%d offen" % (vXa, vT[3], sX, sX + 3, sT0), "xa")
            a.vmem("buffer_load_ushort v%d, v%d, s[%d:%d], s%d offen offset:128" % (vXb, vT[4], sX, sX + 3, sT0),
                   "xb")
    lg = G.bit_length() - 1
    region = G * (512 << 10)
    a("s_lshr_b32 s%d, s%d, %d" % (sT1, sSidx, lg))
    a("s_lshl_b32 s%d, s%d, %d" % (sT2, sT1, 19 + lg))
    a("s_add_u32 s%d, s%d, s%d" % (sK, sK, sT2))
    a("s_addc_u32 s%d, s%d, 0" % (sK + 1, sK + 1))
    a("s_mov_b32 s%d, 0x%x" % (sK + 2, region))
    a("s_mov_b32 s%d, 0x20000" % (sK + 3))
    a("s_add_u32 s%d, s%d, s%d" % (sV, sV, sT2))
    a("s_addc_u32 s%d, s%d, 0" % (sV + 1, sV + 1))
    a("s_mov_b32 s%d, 0x%x" % (sV + 2, region))
    a("s_mov_b32 s%d, 0x20000" % (sV + 3))
    ma, sa = [int(x) for x in p.rot.split(",")]
    a("s_lshl_b32 s%d, s%d, 1" % (sRot, sT1))
    a("s_add_u32 s%d, s%d, s%d" % (sRot, sRot, sProb))
    a("s_mul_i32 s%d, s%d, %d" % (sRot, sRot, ma))
    a("s_lshr_b32 s%d, s%d, %d" % (sRot, sRot, sa))
    a("s_and_b32 s%d, s%d, %d" % (sT2, sSidx, G - 1))
    a("s_lshl_b32 s%d, s%d, 3" % (sT2, sT2))
    a("s_add_u32 s%d, s%d, s%d" % (sT2, sT2, sW))
    a("s_mul_i32 s%d, s%d, %d" % (sT2, sT2, g * 1024))
    a("v_lshlrev_b32 v%d, 4, v%d" % (vOff[0], vLane))
    for k in range(1, (g + 3) // 4):
        a("v_add_u32 v%d, %d, v%d" % (vOff[k], 4096 * k, vOff[0]))
    st_done = set()

    def need_step(t):
        if t in st_done:
            return
        st_done.add(t)
        a("s_add_u32 s%d, s%d, %d" % (sSt + t, sRot, t))
        a("s_and_b32 s%d, s%d, %d" % (sSt + t, sSt + t, nst - 1))
        a("s_mul_i32 s%d, s%d, %d" % (sSt + t, sSt + t, G * NW * g * 1024))
        a("s_add_u32 s%d, s%d, s%d" % (sSt + t, sSt + t, sT2))

    stream = []
    for b in range(NBLK):
        for c in range(16):
            stream.append(("K", b, c))
        for c in range(16):
            stream.append(("V", b, c))
    nxt = [0]

    def issue_upto(n):
        while nxt[0] < min(n, len(stream)):
            j = nxt[0]
            kind, b, c = stream[j]
            jj = b * 16 + c
            t, f = jj // g, jj % g
            need_step(t)
            r = ring0 + 4 * (j % R)
            srd = sK if kind == "K" else sV
            a.vmem("buffer_load_dwordx4 v[%d:%d], v%d, s[%d:%d], s%d offen offset:%d%s" %
                   (r, r + 3, vOff[f >> 2], srd, srd + 3, sSt + t, (f & 3) * 1024, NT), "st%d" % j)
            nxt[0] += 1

    need_step(0)
    if p.qbar:
        a("s_barrier")
    issue_upto(p.p0)
    for t in range(nst):
        need_step(t)
    a("s_mov_b32 s%d, 0x%x" % (sLog2e, LOG2E))
    a("s_mov_b32 s%d, 0x%x" % (sScale, SCALE))
    a("s_mov_b32 s%d, 0xcccccccc" % sM2)
    a("s_mov_b32 s%d, 0xcccccccc" % (sM2 + 1))
    a("s_mov_b32 s%d, 0xaaaaaaaa" % sM1)
    a("s_mov_b32 s%d, 0xaaaaaaaa" % (sM1 + 1))
    a("s_mov_b32 s%d, %d" % (sWo + 2, 4096 * 1280))
    a("s_mov_b32 s%d, 0x20000" % (sWo + 3))
    a("s_mov_b32 s%d, s32" % sWs)
    a("s_mov_b32 s%d, s33" % (sWs + 1))
    a("s_mov_b32 s%d, %d" % (sWs + 2, WS_USED))
    a("s_mov_b32 s%d, 0x20000" % (sWs + 3))
    a("s_and_b32 s%d, s%d, 7" % (sT1, sSidx))
    a("s_lshl_b32 s%d, s%d, 4" % (sT1, sT1))
    a("s_lshr_b32 s%d, s%d, 3" % (sT3, sSidx))
    a("s_add_u32 s%d, s%d, s%d" % (sT1, sT1, sT3))
    a("s_mul_i32 s%d, s%d, %d" % (sYO, sProb, 40 * 128))
    a("s_add_u32 s%d, s%d, s%d" % (sYO, sYO, sT1))
    a("s_lshl_b32 s%d, s%d, 6" % (sYO, sYO))
    a("v_mul_u32_u24 v%d, 2560, v%d" % (vWo, vT[0]))
    a("v_add_u32 v%d, v%d, v%d" % (vWo, vWo, vT[2]))
    a("s_mul_i32 s%d, s%d, 163840" % (sWOff, sHead))
    a("s_lshl_b32 s%d, s%d, 8" % (sT1, sW))
    a("s_add_u32 s%d, s%d, s%d" % (sWOff, sWOff, sT1))
    a("s_cmp_ge_u32 s%d, 5" % sW)
    a("s_cselect_b32 s%d, 0x40000000, s%d" % (sWOff, sWOff))
    for k in range(8):
        a("v_mov_b32 v%d, 0" % acc[k])
    if fused:
        a("s_cmp_lg_u32 s%d, 7" % sW)
        a("s_cbranch_scc1 L_noclear")
        c4 = vS[0]
        for e in range(4):
            a("v_mov_b32 v%d, -1" % (c4 + e))
        a("v_lshrrev_b32 v%d, 2, v%d" % (vS[4], vLane))
        a("v_and_b32 v%d, 3, v%d" % (vS[5], vLane))
        a("v_lshlrev_b32 v%d, 4, v%d" % (vS[5], vS[5]))
        a("v_lshl_add_u32 v%d, v%d, 13, v%d" % (vS[4], vS[4], vS[5]))
        a("v_mov_b32 v%d, 0" % vS[5])
        a("s_add_u32 s%d, s%d, %d" % (sT1, sYO, 16 * 8192))
        a("s_add_u32 s%d, s%d, %d" % (sT3, sYO, 32 * 8192))
        a("buffer_store_dwordx4 v[%d:%d], v%d, s[%d:%d], s%d offen sc1" % (c4, c4 + 3, vS[4], sWs, sWs + 3, sYO))
        a("buffer_store_dwordx4 v[%d:%d], v%d, s[%d:%d], s%d offen sc1" % (c4, c4 + 3, vS[4], sWs, sWs + 3, sT1))
        a("s_mov_b32 exec_hi, 0")
        a("buffer_store_dwordx4 v[%d:%d], v%d, s[%d:%d], s%d offen sc1" % (c4, c4 + 3, vS[4], sWs, sWs + 3, sT3))
        a("s_lshl_b32 s%d, s%d, 7" % (sT1, sProb))
        a("s_add_u32 s%d, s%d, s%d" % (sT1, sT1, sSidx))
        a("s_lshl_b32 s%d, s%d, 3" % (sT1, sT1))
        a("s_add_u32 s%d, s%d, %d" % (sT1, sT1, ML_OFF))
        a("s_mov_b32 exec_lo, 1")
        a("buffer_store_dwordx2 v[%d:%d], v%d, s[%d:%d], s%d offen sc1" % (c4, c4 + 1, vS[5], sWs, sWs + 3, sT1))
        a("s_mov_b64 exec, -1")
        a.label("L_noclear")
    stamp(a, p, 1)
    vXah, vXbh = vT[7], vT[2]
    a.wait_vm("xb")
    a("v_lshlrev_b32 v%d, 16, v%d" % (vXah, vXa))
    a("v_lshlrev_b32 v%d, 16, v%d" % (vXbh, vXb))
    for t in range(20):
        a.wait_vm("wq%d" % t)
        if t < 16:
            bcast_mac(a, acc, vXa, vXah, t, W0 + 4 * t)
        else:
            bcast_mac(a, acc, vXb, vXbh, t - 16, W0 + 4 * t)
    reduce_rows(a, acc)
    vLdsW, vLdsR = vT[3], vT[5]
    a("v_lshlrev_b32 v%d, 5, v%d" % (vT[4], vT[1]))
    a("v_lshl_add_u32 v%d, v%d, 3, v%d" % (vLdsR, vT[0], vT[4]))
    a("s_lshl_b32 s%d, s%d, 9" % (sT0, sW))
    a("v_add_u32 v%d, s%d, v%d" % (vLdsW, sT0, vLdsR))
    a("ds_write_b64 v%d, v[%d:%d]" % (vLdsW, acc[0], acc[1]))
    a("s_waitcnt lgkmcnt(0)")
    a("s_barrier")
    for w in range(8):
        for h in range(2):
            r = W0 + 8 * w + 4 * h
            a("ds_read_b128 v[%d:%d], v%d offset:%d" % (r, r + 3, vT[4], w * 512 + 16 * h))
    a("s_mov_b32 s%d, s28" % sOut)
    a("s_mov_b32 s%d, s29" % (sOut + 1))
    a("s_mov_b32 s%d, 2560" % (sOut + 2))
    a("s_mov_b32 s%d, 0x20000" % (sOut + 3))
    a("s_mov_b32 s%d, s30" % sDbg)
    a("s_mov_b32 s%d, s31" % (sDbg + 1))
    a("s_mov_b32 s%d, 256" % (sDbg + 2))
    a("s_mov_b32 s%d, 0x20000" % (sDbg + 3))
    for k in range(8):
        a("v_mov_b32 v%d, 0" % acc[k])
    a("v_mov_b32 v%d, 0" % vL)
    a("s_waitcnt lgkmcnt(0)")
    for step in (4, 2, 1):
        for w in range(step):
            for e in range(8):
                a("v_add_f32 v%d, v%d, v%d" % (W0 + 8 * w + e, W0 + 8 * w + e, W0 + 8 * (w + step) + e))
    for j in range(4):
        a("v_cvt_pk_bf16_f32 v%d, v%d, v%d" % (vQ + j, W0 + 2 * j, W0 + 2 * j + 1))
    if fused:
        a("s_cmp_lg_u32 s%d, 7" % sW)
        a("s_cbranch_scc1 L_nosig")
        a("v_mov_b32 v%d, 1" % vS[0])
        a("v_mov_b32 v%d, 0" % vS[1])
        a("s_mov_b64 exec, 1")
        a("s_waitcnt vmcnt(0)")
        a("buffer_atomic_add v%d, v%d, s[%d:%d], 0 offen" % (vS[0], vS[1], sDbg, sDbg + 3))
        a("s_mov_b64 exec, -1")
        a.label("L_nosig")
    stamp(a, p, 2)
    wo_next = [0]
    wo_perm = [0]
    woreg = {}
    spare = [vSpare]
    sSelLo, sSelHi = 8, 9
    a("s_mov_b32 s%d, 0x05040100" % sSelLo)
    a("s_mov_b32 s%d, 0x07060302" % sSelHi)

    def issue_wo():
        c = wo_next[0]
        if c >= 32:
            return
        r = W0 + 4 * c
        a.vmem("buffer_load_dwordx4 v[%d:%d], v%d, s[%d:%d], s%d offen offset:%d%s" %
               (r, r + 3, vWo, sWo, sWo + 3, sWOff, 1280 * (c & 1), WOM), "wo%d" % c)
        if c & 1:
            a("s_add_u32 s%d, s%d, 10240" % (sWOff, sWOff))
        wo_next[0] += 1

    def perm_wo(force):
        while wo_perm[0] < 16:
            u = wo_perm[0]
            tag = "wo%d" % (2 * u + 1)
            if wo_next[0] <= 2 * u + 1:
                return
            if tag in a.vm:
                if not force:
                    return
                a.wait_vm(tag)
            ra, rb = W0 + 8 * u, W0 + 8 * u + 4
            for j in range(4):
                lo = spare[0]
                a("v_perm_b32 v%d, v%d, v%d, s%d" % (lo, rb + j, ra + j, sSelLo))
                a("v_perm_b32 v%d, v%d, v%d, s%d" % (rb + j, rb + j, ra + j, sSelHi))
                woreg[(u, 2 * j)] = lo
                woreg[(u, 2 * j + 1)] = rb + j
                spare[0] = ra + j
            wo_perm[0] += 1

    for j, (kind, b, c) in enumerate(stream):
        r = ring0 + 4 * (j % R)
        a.wait_vm("st%d" % j)
        if kind == "K":
            a("v_dot2_f32_bf16 v%d, v%d, v%d, 0" % (vS[c], r, vQ))
            for k in range(1, 4):
                a("v_dot2_f32_bf16 v%d, v%d, v%d, v%d" % (vS[c], r + k, vQ + k, vS[c]))
        else:
            bcast_mac(a, acc, vPlo, vPhi, c, r)
        issue_upto(j + 1 + p.depth)
        if j >= p.wo_start and (j - p.wo_start) % p.wo_every == 0:
            issue_wo()
        perm_wo(False)
        if kind == "K" and c == 15:
            for cc in range(8):
                a("v_add_f32_dpp v%d, v%d, v%d row_mirror %s" % (vS[cc], vS[cc], vS[cc], DPPF))
            for cc in range(8):
                a("v_add_f32_dpp v%d, v%d, v%d row_mirror row_mask:0xf bank_mask:0xc" %
                  (vS[cc], vS[cc + 8], vS[cc + 8]))
            for cc in range(4):
                a("v_add_f32_dpp v%d, v%d, v%d row_half_mirror %s" % (vS[cc], vS[cc], vS[cc], DPPF))
            for cc in range(4):
                a("v_add_f32_dpp v%d, v%d, v%d row_half_mirror row_mask:0xf bank_mask:0xa" %
                  (vS[cc], vS[cc + 4], vS[cc + 4]))
            for cc in range(4):
                a("v_add_f32_dpp v%d, v%d, v%d quad_perm:[2,3,0,1] %s" % (vS[cc], vS[cc], vS[cc], DPPF))
            for cc in range(2):
                a("v_cndmask_b32 v%d, v%d, v%d, s[%d:%d]" % (vS[cc], vS[cc], vS[cc + 2], sM2, sM2 + 1))
            for cc in range(2):
                a("v_add_f32_dpp v%d, v%d, v%d quad_perm:[1,0,3,2] %s" % (vS[cc], vS[cc], vS[cc], DPPF))
            s = vS[0]
            a("v_cndmask_b32 v%d, v%d, v%d, s[%d:%d]" % (s, vS[0], vS[1], sM1, sM1 + 1))
            a("v_cvt_pk_bf16_f32 v%d, 0, v%d" % (s, s))
            a("v_mul_f32 v%d, s%d, v%d" % (s, sScale, s))
            a("v_cvt_pk_bf16_f32 v%d, 0, v%d" % (s, s))
            bm, tmp, al = vS[1], vS[2], vS[3]
            a("v_mov_b32 v%d, v%d" % (bm, s))
            wave_allreduce(a, "v_max_f32", bm, tmp)
            if b == 0:
                a("v_mov_b32 v%d, v%d" % (vM, bm))
            else:
                a("v_max_f32 v%d, v%d, v%d" % (bm, bm, vM))
                a("v_sub_f32 v%d, v%d, v%d" % (al, vM, bm))
                a("v_mul_f32 v%d, s%d, v%d" % (al, sLog2e, al))
                a("v_exp_f32 v%d, v%d" % (al, al))
                a("v_mov_b32 v%d, v%d" % (vM, bm))
            a("v_sub_f32 v%d, v%d, v%d" % (s, s, vM))
            a("v_mul_f32 v%d, s%d, v%d" % (s, sLog2e, s))
            a("v_exp_f32 v%d, v%d" % (s, s))
            if b != 0:
                for k in range(8):
                    a("v_mul_f32 v%d, v%d, v%d" % (acc[k], al, acc[k]))
                a("v_mul_f32 v%d, v%d, v%d" % (vL, al, vL))
            a("v_add_f32 v%d, v%d, v%d" % (vL, vL, s))
            a("v_cvt_pk_bf16_f32 v%d, v%d, 0" % (vPlo, s))
            a("v_cvt_pk_bf16_f32 v%d, 0, v%d" % (vPhi, s))
            if b == NBLK - 1:
                while wo_next[0] < 32:
                    issue_wo()
                wave_allreduce(a, "v_add_f32", vL, vS[4])
                a("s_lshl_b32 s%d, s%d, 3" % (sT0, sW))
                a("v_mov_b32 v%d, s%d" % (vS[5], sT0))
                a("s_mov_b64 exec, 1")
                a("ds_write_b64 v%d, v[%d:%d] offset:8192" % (vS[5], vM, vL))
                a("s_mov_b64 exec, -1")
                a("v_and_b32 v%d, 7, v%d" % (vS[6], vLane))
                a("v_lshlrev_b32 v%d, 3, v%d" % (vS[6], vS[6]))
                a("v_lshrrev_b32 v%d, 1, v%d" % (vS[10], vT[1]))
                a("v_lshlrev_b32 v%d, 13, v%d" % (vS[10], vS[10]))
                a("v_and_b32 v%d, 1, v%d" % (vS[11], vT[1]))
                a("v_lshl_add_u32 v%d, v%d, 5, v%d" % (vS[10], vS[11], vS[10]))
                a("v_lshl_add_u32 v%d, v%d, 3, v%d" % (vS[10], vT[0], vS[10]))
                a("s_lshl_b32 s%d, s%d, 16" % (sT0, sW))
                a("s_add_u32 s%d, s%d, s%d" % (sYO, sYO, sT0))
                a("s_mov_b32 s%d, -2" % sT0)
        if j == len(stream) - 3:
            perm_wo(True)
    assert wo_perm[0] == 16
    stamp(a, p, 3)
    reduce_rows(a, acc)
    a("ds_write_b64 v%d, v[%d:%d] offset:4096" % (vLdsW, acc[0], acc[1]))
    a("s_cmp_ge_u32 s%d, 5" % sW)
    a("s_waitcnt lgkmcnt(0)")
    a("s_barrier")
    a("s_cbranch_scc1 L_aux")
    stamp(a, p, 4)
    ml = ring0
    ov = ring0 + 4
    mx, tq = ring0 + 2, ring0 + 3
    a("ds_read_b32 v%d, v%d offset:8192" % (ml, vS[6]))
    for w in range(0, 8, 2):
        a("ds_read2st64_b64 v[%d:%d], v%d offset0:%d offset1:%d" %
          (ov + 2 * w, ov + 2 * w + 3, vLdsR, 8 + w, 8 + w + 1))
    a("s_waitcnt lgkmcnt(%d)" % (0 if p.stamps else 4))
    a("v_max_f32_dpp v%d, v%d, v%d quad_perm:[1,0,3,2] %s" % (mx, ml, ml, DPPF))
    a("v_max_f32_dpp v%d, v%d, v%d quad_perm:[2,3,0,1] %s" % (mx, mx, mx, DPPF))
    a("v_max_f32_dpp v%d, v%d, v%d row_half_mirror %s" % (mx, mx, mx, DPPF))
    a("v_sub_f32 v%d, v%d, v%d" % (ml, ml, mx))
    a("v_mul_f32 v%d, s%d, v%d" % (ml, sLog2e, ml))
    a("v_exp_f32 v%d, v%d" % (ml, ml))
    a("s_waitcnt lgkmcnt(0)")
    oA, oB, oC, oD = vS[0], vS[1], vS[2], vS[3]
    for w in range(8):
        dA, dB = (oA, oB) if w % 2 == 0 else (oC, oD)
        op = "v_mul_f32_dpp" if w < 2 else "v_fmac_f32_dpp"
        a("%s v%d, v%d, v%d row_newbcast:%d %s" % (op, dA, ml, ov + 2 * w, w, DPPF))
        a("%s v%d, v%d, v%d row_newbcast:%d %s" % (op, dB, ml, ov + 2 * w + 1, w, DPPF))
    a("v_add_f32 v%d, v%d, v%d" % (oA, oA, oC))
    a("v_add_f32 v%d, v%d, v%d" % (oB, oB, oD))
    a("v_cvt_pk_bf16_f32 v%d, v%d, v%d" % (oA, oA, oB))
    for k in range(8):
        a("v_mov_b32 v%d, 0" % acc[k])
    for u in range(16):
        for e in range(8):
            a("v_dot2c_f32_bf16_dpp v%d, v%d, v%d row_newbcast:%d %s" % (acc[e], oA, woreg[(u, e)], u, DPPF))
    reduce_rows(a, acc)
    if fused:
        a("v_min_u32 v%d, s%d, v%d" % (acc[0], sT0, acc[0]))
        a("v_min_u32 v%d, s%d, v%d" % (acc[1], sT0, acc[1]))
    a("buffer_store_dwordx2 v[%d:%d], v%d, s[%d:%d], s%d offen%s" % (acc[0], acc[1], vS[10], sWs, sWs + 3, sYO, SC))
    if p.stamps:
        a("s_cmp_lg_u32 s%d, 0" % sW)
        a("s_cbranch_scc1 L_end")
        stamp(a, p, 5)
        a("s_mov_b64 exec, 1")
        stamp_store(a, p, range(6), 2, 12, 14)
    a("s_endpgm")
    a.label("L_aux")
    a("s_cmp_eq_u32 s%d, 6" % sW)
    a("s_cbranch_scc0 L_aux2")
    a("ds_read_b64 v[%d:%d], v%d offset:8192" % (ml, ml + 1, vS[6]))
    a("s_lshl_b32 s%d, s%d, 7" % (sT1, sProb))
    a("s_add_u32 s%d, s%d, s%d" % (sT1, sT1, sSidx))
    a("s_lshl_b32 s%d, s%d, 3" % (sT1, sT1))
    a("s_add_u32 s%d, s%d, %d" % (sT1, sT1, ML_OFF))
    a("v_mov_b32 v%d, 0" % vS[0])
    a("s_waitcnt lgkmcnt(0)")
    a("v_max_f32_dpp v%d, v%d, v%d quad_perm:[1,0,3,2] %s" % (mx, ml, ml, DPPF))
    a("v_max_f32_dpp v%d, v%d, v%d quad_perm:[2,3,0,1] %s" % (mx, mx, mx, DPPF))
    a("v_max_f32_dpp v%d, v%d, v%d row_half_mirror %s" % (mx, mx, mx, DPPF))
    a("v_sub_f32 v%d, v%d, v%d" % (ml, ml, mx))
    a("v_mul_f32 v%d, s%d, v%d" % (ml, sLog2e, ml))
    a("v_exp_f32 v%d, v%d" % (ml, ml))
    a("v_mul_f32 v%d, v%d, v%d" % (tq, ml, ml + 1))
    a("v_add_f32_dpp v%d, v%d, v%d quad_perm:[1,0,3,2] %s" % (tq, tq, tq, DPPF))
    a("v_add_f32_dpp v%d, v%d, v%d quad_perm:[2,3,0,1] %s" % (tq, tq, tq, DPPF))
    a("v_add_f32_dpp v%d, v%d, v%d row_half_mirror %s" % (tq, tq, tq, DPPF))
    if fused:
        a("v_min_u32 v%d, s%d, v%d" % (mx, sT0, mx))
        a("v_min_u32 v%d, s%d, v%d" % (tq, sT0, tq))
    a("s_mov_b64 exec, 1")
    a("buffer_store_dwordx2 v[%d:%d], v%d, s[%d:%d], s%d offen%s" % (mx, tq, vS[0], sWs, sWs + 3, sT1, SC))
    a("s_endpgm")
    a.label("L_aux2")
    if fused:
        a("s_cmp_eq_u32 s%d, 5" % sW)
        a("s_cbranch_scc0 L_end")
        a("s_cmp_ge_u32 s2, %d" % NCONS)
        a("s_cbranch_scc1 L_end")
        consumer(a, p, True, 2, sWs, sOut, sDbg, vLane, W0, "L_c")
        if p.stamps:
            stamp(a, p, 7)
            a("s_mov_b64 exec, 1")
            stamp_store(a, p, [6, 7], 2, 12, 14)
    a.raw("L_end:")
    a("s_endpgm")
    return a, kname, nvgpr


def gen_k2(p):
    a = Asm()
    kname = "reduce_kernel"
    a.raw(".globl %s" % kname)
    a.raw(".p2align 8")
    a.raw(".type %s,@function" % kname)
    a.raw("%s:" % kname)
    a("s_cmp_ge_u32 s2, 80")
    a("s_cbranch_scc1 L_k2_end")
    stamp(a, p, 6)
    a("s_load_dwordx2 s[32:33], s[0:1], 96")
    a("s_load_dwordx2 s[40:41], s[0:1], 80")
    a("s_load_dwordx2 s[44:45], s[0:1], 96")
    a("s_mov_b32 s42, 2560")
    a("s_mov_b32 s43, 0x20000")
    a("s_mov_b32 s46, %d" % WS_USED)
    a("s_mov_b32 s47, 0x20000")
    a("s_waitcnt lgkmcnt(0)")
    consumer(a, p, False, 2, 44, 40, None, 0, 16, "L_k2")
    if p.stamps:
        stamp(a, p, 7)
        a("s_mov_b64 exec, 1")
        stamp_store(a, p, [6, 7], 2, 12, 14)
    a.raw("L_k2_end:")
    a("s_endpgm")
    return a, kname, 72


def main():
    ap = argparse.ArgumentParser()
    ap.add_argument("--ring", type=int, default=16)
    ap.add_argument("--p0", type=int, default=12)
    ap.add_argument("--depth", type=int, default=6)
    ap.add_argument("--group", type=int, default=2)
    ap.add_argument("--gran", type=int, default=8)
    ap.add_argument("--rot", default="1,2")
    ap.add_argument("--qbar", type=int, default=0)
    ap.add_argument("--nt", type=int, default=1)
    ap.add_argument("--wq_nt", type=int, default=0)
    ap.add_argument("--wo_nt", type=int, default=0)
    ap.add_argument("--wo_start", type=int, default=16)
    ap.add_argument("--wo_every", type=int, default=2)
    ap.add_argument("--fused", type=int, default=1)
    ap.add_argument("--stamps", type=int, default=0)
    ap.add_argument("--probe", default="")
    ap.add_argument("-o", default="cdna_kernels/%s.s" % NAME)
    p = ap.parse_args()
    assert p.p0 <= p.ring and p.depth <= p.ring
    k1, n1, v1 = gen_k1(p)
    ks = [(k1, n1, v1, "grid=(256,1,1) block=(512,1,1) lds=8448")]
    if not p.fused:
        k2, n2, v2 = gen_k2(p)
        ks.append((k2, n2, v2, "grid=(80,1,1) block=(64,1,1) lds=0"))
    if p.probe:
        k3, n3, v3 = gen_probe(p)
        ks.append((k3, n3, v3, "grid=(1,1,1) block=(64,1,1) lds=0"))
    out = HEADER
    if len(ks) == 1:
        out += "; @launch %s\n" % ks[0][3]
    else:
        for k in ks:
            out += "; @launch kernel=%s %s\n" % (k[1], k[3])
    out += '.amdgcn_target "amdgcn-amd-amdhsa--gfx950"\n.text\n'
    for k in ks:
        out += k[0].text()
    out += '.section .rodata,"a"\n'
    for k in ks:
        out += ".p2align 6\n" + desc(k[1], k[2])
    open(p.o, "w").write(out)
    print("wrote", p.o, "k1 vgprs", v1, "nops", k1.nops)


if __name__ == "__main__":
    main()
```
